```python
import torch

def _softmax(x, axis=-1):
    return torch.softmax(x, dim=axis)
def _gelu(x):
    return torch.nn.functional.gelu(x, approximate="tanh")
def _silu(x):
    return torch.nn.functional.silu(x)
def _sigmoid(x):
    return torch.sigmoid(x)
def _layernorm(x, axis=-1, eps=1e-5):
    m = x.mean(dim=axis, keepdim=True)
    v = x.var(dim=axis, keepdim=True, unbiased=False)
    return (x - m) / torch.sqrt(v + eps)
def _scatter_add(tgt, idx, src, axis=0):
    return tgt.clone().index_add_(axis, idx, src)
def _segment_sum(src, seg, n):
    out = torch.zeros((n,) + src.shape[1:], dtype=src.dtype)
    return out.index_add_(0, seg, src)
def _pad(x, pw):
    flat = tuple(v for pair in reversed(pw) for v in pair)
    return torch.nn.functional.pad(x, flat)

kernel_name = 'parallel_sum__ssm_conv_s4d__glu_gated_bilinear__prompt'

def setup_inputs():

    _w = (lambda a: (lambda t: t.to(torch.bfloat16) if t.is_floating_point() else t)(torch.as_tensor(a)))
    def _A_setup():
        Bsz, L, D, N = 1, 2048, 576, 128
        return {
            "u": _w((lambda *s: torch.randn(*s, dtype=torch.bfloat16) * 0.05)(Bsz, L, D)),
            "log_A_real": _w((lambda *s: torch.randn(*s, dtype=torch.bfloat16) * 3.2)(D, N) * 0.5),
            "A_imag": _w((lambda *s: torch.randn(*s, dtype=torch.bfloat16) * 0.05)(D, N) * 3.14),
            "C_real": _w((lambda *s: torch.randn(*s, dtype=torch.bfloat16) * 0.2)(D, N) / N ** 0.5),
            "C_imag": _w((lambda *s: torch.randn(*s, dtype=torch.bfloat16) * 0.2)(D, N) / N ** 0.5),
            "log_dt": _w((lambda *s: torch.randn(*s, dtype=torch.bfloat16) * 0.05)(D) * 0.5 - 4.0),
            "D_skip": _w((lambda *s: torch.randn(*s, dtype=torch.bfloat16) * 0.05)(D)),
        }
    _A_in = _A_setup()

    def _B_setup():
        B, S, D, F = 1, 2048, 576, 4608
        return {
            "x": _w((lambda *s: torch.randn(*s, dtype=torch.bfloat16) * 0.05)(B, S, D)),
            "w_gate": _w((lambda *s: torch.randn(*s, dtype=torch.bfloat16) * 0.4)(D, F) * (D ** -0.5)),
            "w_up": _w((lambda *s: torch.randn(*s, dtype=torch.bfloat16) * 0.4)(D, F) * (D ** -0.5)),
            "w_down": _w((lambda *s: torch.randn(*s, dtype=torch.bfloat16) * 0.4)(F, D) * (F ** -0.5)),
        }
    _B_in = _B_setup()

    return {
        "A_u": _A_in["u"],
        "A_log_A_real": _A_in["log_A_real"],
        "A_A_imag": _A_in["A_imag"],
        "A_C_real": _A_in["C_real"],
        "A_C_imag": _A_in["C_imag"],
        "A_log_dt": _A_in["log_dt"],
        "A_D_skip": _A_in["D_skip"],
        "B_x": _B_in["x"],
        "B_w_gate": _B_in["w_gate"],
        "B_w_up": _B_in["w_up"],
        "B_w_down": _B_in["w_down"],
    }

def reference(A_u, A_log_A_real, A_A_imag, A_C_real, A_C_imag, A_log_dt, A_D_skip, B_x, B_w_gate, B_w_up, B_w_down):
    def _A_ref(u, log_A_real, A_imag, C_real, C_imag, log_dt, D_skip):
        L = u.shape[1]
        dt = torch.exp(log_dt)
        A = -torch.exp(log_A_real) + 1j * A_imag
        C = (C_real + 1j * C_imag) * dt[:, None]
        pos = (lambda x, dt: x.to(dt))(torch.arange(L), log_dt.dtype)
        P = torch.exp((A * dt[:, None])[:, :, None] * pos[None, None, :])
        K = 2.0 * torch.einsum("dn,dnl->dl", C, P).real
        L2 = 2 * L
        u_t = (lambda x, *d: x.permute(*d))(u, 0, 2, 1)
        Kf = (lambda x, *a, **k: torch.fft.rfft(x.float(), *a, **k))(K, L2)
        Uf = (lambda x, *a, **k: torch.fft.rfft(x.float(), *a, **k))(u_t, L2)
        y = (lambda x, *a, **k: torch.fft.irfft(x, *a, **k).to(torch.bfloat16))(Uf * Kf[None, :, :], L2)[:, :, :L]
        y = (lambda x, *d: x.permute(*d))(y, 0, 2, 1)
        return y + u * D_skip[None, None, :]

    def _B_ref(x, w_gate, w_up, w_down):
        g = torch.einsum("bsd,df->bsf", x, w_gate)
        u = torch.einsum("bsd,df->bsf", x, w_up)
        h = g * u
        return torch.einsum("bsf,fd->bsd", h, w_down)

    x = A_u
    xn = _layernorm(x, axis=-1)
    return x + _A_ref(xn, A_log_A_real, A_A_imag, A_C_real, A_C_imag, A_log_dt, A_D_skip) + _B_ref(xn, B_w_gate, B_w_up, B_w_down)
```

```python
class Asm:
    def __init__(self):
        self.lines = []
        self.kernels = []
        self.uid = 0
    def e(self, s):
        for l in s.split("\n"):
            l = l.strip()
            if l:
                self.lines.append(("" if l.endswith(":") else "    ") + l)
    def __call__(self, s):
        self.e(s)
    def label(self, base):
        self.uid += 1
        return f"L_{base}_{self.uid}"
    def begin(self, name):
        self.lines.append(f".globl {name}")
        self.lines.append(".p2align 8")
        self.lines.append(f".type {name},@function")
        self.lines.append(f"{name}:")
    def end(self, name, grid, block, lds, vgpr=256, accum=256, sgpr=102):
        self.e("s_endpgm")
        self.kernels.append((name, grid, block, lds, vgpr, accum, sgpr))
    def text(self, header="", launches=None, single=False):
        out = []
        if header:
            out.append(header.rstrip("\n"))
        ks = {k[0]: k for k in self.kernels}
        if launches is None:
            launches = [k[0] for k in self.kernels]
        if single:
            k = ks[launches[0]]
            out.append(f"; @launch grid=({k[1]},1,1) block=({k[2]},1,1) lds={k[3]}")
        else:
            for n in launches:
                k = ks[n]
                out.append(f"; @launch kernel={n} grid=({k[1]},1,1) block=({k[2]},1,1) lds={k[3]}")
        out.append('.amdgcn_target "amdgcn-amd-amdhsa--gfx950"')
        out.append(".text")
        out += self.lines
        out.append('.section .rodata,"a"')
        for (name, grid, block, lds, vgpr, accum, sgpr) in self.kernels:
            out.append(".p2align 6")
            out.append(f".amdhsa_kernel {name}")
            out.append(f"  .amdhsa_next_free_vgpr {vgpr}")
            out.append(f"  .amdhsa_next_free_sgpr {sgpr}")
            out.append(f"  .amdhsa_accum_offset {accum}")
            out.append("  .amdhsa_group_segment_fixed_size 0")
            out.append("  .amdhsa_kernarg_size 112")
            out.append("  .amdhsa_user_sgpr_count 2")
            out.append("  .amdhsa_user_sgpr_kernarg_segment_ptr 1")
            out.append("  .amdhsa_system_sgpr_workgroup_id_x 1")
            out.append(".end_amdhsa_kernel")
        return "\n".join(out) + "\n"

def srd(a, d, base, nbytes):
    if d != base:
        a(f"s_mov_b32 s{d}, s{base}")
        a(f"s_mov_b32 s{d+1}, s{base+1}")
    a(f"s_mov_b32 s{d+2}, {nbytes}")
    a(f"s_mov_b32 s{d+3}, 0x00020000")

OFF = dict(x=0, lar=8, aim=16, cre=24, cim=32, ldt=40, dsk=48, bx=56, wg=64, wu=72, wd=80, out=88, dbg=96, ws=104)
```

```python
import sys
sys.path.insert(0, "work")
from asmlib import *
from sched import *

NAME = "parallel_sum__ssm_conv_s4d__glu_gated_bilinear__prompt"
XF_OFF = 0;          XF_SZ = 32 * 73728
XT_OFF = 0x300000;   XT_STR = 4224; XT_SZ = 576 * XT_STR
YT_OFF = 0x600000;   YT_SZ = 576 * 4096
KR_OFF = 0x900000
HF_OFF = 0x1000000;  HF_SZ = 144 * 131072
X_SZ = 2048 * 1152; W_SZ = 576 * 9216

def ws_srd(a, d, wsp, off, size):
    a(f"s_add_u32 s{d}, s{wsp}, {off}")
    a(f"s_addc_u32 s{d+1}, s{wsp+1}, 0")
    a(f"s_mov_b32 s{d+2}, {size}")
    a(f"s_mov_b32 s{d+3}, 0x00020000")

def f32hex(x):
    import struct
    return hex(struct.unpack("<I", struct.pack("<f", x))[0])

def ln_wave(st, sWG, sX, sXF, sXT, lane, ldsbase, R=8, sc=" sc1", sT=40, after_xf=None):
    a = st
    raw = R + 8; F = R + 48
    t0, t1, t2, t3, t4, t5 = R, R + 1, R + 2, R + 3, R + 4, R + 5
    acc = R + 44
    LS = 1344
    a(f"v_lshrrev_b32 v{t0}, 3, v{lane}")
    a(f"v_and_b32 v{t1}, 7, v{lane}")
    a(f"s_mul_i32 s{sT}, s{sWG}, {8*1152}")
    a(f"v_mul_u32_u24 v{t2}, 1152, v{t0}")
    a(f"v_lshl_add_u32 v{t2}, v{t1}, 4, v{t2}")
    for g in range(9):
        st.vmem(f"buffer_load_dwordx4 v[{raw+4*g}:{raw+4*g+3}], v{t2}, s[{sX}:{sX+3}], s{sT} offen offset:{g*128}", ("ln", g))
    a(f"v_mul_u32_u24 v{t2}, {LS}, v{t0}")
    a(f"v_lshl_add_u32 v{t2}, v{t1}, 4, v{t2}")
    a(f"v_mul_u32_u24 v{t3}, {LS}, v{t1}")
    a(f"v_lshl_add_u32 v{t3}, v{t0}, 4, v{t3}")
    if ldsbase:
        a(f"v_add_u32 v{t2}, {ldsbase}, v{t2}")
        a(f"v_add_u32 v{t3}, {ldsbase}, v{t3}")
    a(f"v_lshrrev_b32 v{t4}, 2, v{t0}")
    a(f"v_lshlrev_b32 v{t4}, 12, v{t4}")
    a(f"v_and_b32 v{t5}, 3, v{t0}")
    a(f"v_lshl_add_u32 v{t4}, v{t5}, 8, v{t4}")
    a(f"v_lshl_add_u32 v{t4}, v{t1}, 4, v{t4}")
    a(f"s_lshr_b32 s{sT}, s{sWG}, 3")
    a(f"s_mul_i32 s{sT}, s{sT}, 73728")
    a(f"s_bfe_u32 s{sT+1}, s{sWG}, 0x20001")
    a(f"s_lshl_b32 s{sT+1}, s{sT+1}, 10")
    a(f"s_add_u32 s{sT}, s{sT}, s{sT+1}")
    a(f"s_and_b32 s{sT+1}, s{sWG}, 1")
    a(f"s_lshl_b32 s{sT+1}, s{sT+1}, 7")
    a(f"s_add_u32 s{sT}, s{sT}, s{sT+1}")
    a(f"s_mov_b32 s{sT+2}, 0xffff0000")
    for g in range(9):
        st.wait(vm=("ln", g))
        for i in range(4):
            r = raw + 4 * g + i; f = F + 8 * g + 2 * i
            a(f"v_lshlrev_b32 v{f}, 16, v{r}")
            a(f"v_and_b32 v{f+1}, s{sT+2}, v{r}")
        for i in range(4):
            f = F + 8 * g + 2 * i; ac = acc + 2 * (i & 1)
            if g == 0 and i < 2:
                continue
            if g == 0:
                a(f"v_pk_add_f32 v[{ac}:{ac+1}], v[{f-4}:{f-3}], v[{f}:{f+1}]")
            else:
                a(f"v_pk_add_f32 v[{ac}:{ac+1}], v[{ac}:{ac+1}], v[{f}:{f+1}]")
    def red():
        a(f"v_pk_add_f32 v[{acc}:{acc+1}], v[{acc}:{acc+1}], v[{acc+2}:{acc+3}]")
        a("s_nop 0")
        a(f"v_add_f32 v{acc}, v{acc}, v{acc+1}")
        for d in ("quad_perm:[1,0,3,2]", "quad_perm:[2,3,0,1]", "row_half_mirror"):
            a("s_nop 1")
            a(f"v_add_f32_dpp v{acc}, v{acc}, v{acc} {d} row_mask:0xf bank_mask:0xf")
        a(f"v_mul_f32 v{acc}, {f32hex(1/576)}, v{acc}")
    red()
    mean = raw; mb = raw + 1; rr = raw + 2; cc = raw + 3
    a(f"v_mov_b32 v{mean}, v{acc}")
    a(f"v_cvt_pk_bf16_f32 v{mb}, v{acc}, v{acc}")
    for k in range(36):
        f = F + 2 * k
        a(f"v_pk_add_f32 v[{f}:{f+1}], v[{f}:{f+1}], v[{mean}:{mean+1}] op_sel_hi:[1,0] neg_lo:[0,1] neg_hi:[0,1]")
    for k in range(36):
        f = F + 2 * k; ac = acc + 2 * (k & 1)
        if k < 2: a(f"v_pk_mul_f32 v[{ac}:{ac+1}], v[{f}:{f+1}], v[{f}:{f+1}]")
        else: a(f"v_pk_fma_f32 v[{ac}:{ac+1}], v[{f}:{f+1}], v[{f}:{f+1}], v[{ac}:{ac+1}]")
    red()
    a(f"v_cvt_pk_bf16_f32 v{acc}, v{acc}, v{acc}")
    a(f"v_lshlrev_b32 v{mb}, 16, v{mb}")
    a(f"v_lshlrev_b32 v{acc}, 16, v{acc}")
    a(f"v_add_f32 v{acc}, {f32hex(1e-5)}, v{acc}")
    a(f"v_cvt_pk_bf16_f32 v{acc}, v{acc}, v{acc}")
    a(f"v_sub_f32 v{mb}, v{mean}, v{mb}")
    a(f"v_lshlrev_b32 v{acc}, 16, v{acc}")
    a(f"v_sqrt_f32 v{acc}, v{acc}")
    a("s_nop 0")
    a(f"v_cvt_pk_bf16_f32 v{acc}, v{acc}, v{acc}")
    a(f"v_lshlrev_b32 v{acc}, 16, v{acc}")
    a(f"v_rcp_f32 v{rr}, v{acc}")
    a("s_nop 0")
    a(f"v_mul_f32 v{cc}, v{mb}, v{rr}")
    P = raw + 4
    for g in range(9):
        p = P + 4 * (g & 3)
        for i in range(4):
            f = F + 8 * g + 2 * i
            a(f"v_pk_fma_f32 v[{f}:{f+1}], v[{f}:{f+1}], v[{rr}:{rr+1}], v[{rr}:{rr+1}] op_sel:[0,0,1] op_sel_hi:[1,0,1]")
        for i in range(4):
            f = F + 8 * g + 2 * i
            a(f"v_cvt_pk_bf16_f32 v{p+i}, v{f}, v{f+1}")
        st.lds(f"ds_write_b128 v{t2}, v[{p}:{p+3}] offset:{g*128}", ("lnw", g))
    for g in range(9):
        st.lds(f"ds_read_b128 v[{F+4*g}:{F+4*g+3}], v{t3} offset:{g*128}", ("lnr", g))
    for g in range(9):
        st.wait(lg=("lnr", g))
        st.vmem(f"buffer_store_dwordx4 v[{F+4*g}:{F+4*g+3}], v{t4}, s[{sXF}:{sXF+3}], s{sT} offen{sc}", "xfst")
        if g < 8: a(f"s_add_u32 s{sT}, s{sT}, 8192")
    a(f"v_bfe_u32 v{t0}, v{lane}, 2, 2")
    a(f"v_mul_u32_u24 v{t0}, {LS}, v{t0}")
    a(f"v_lshrrev_b32 v{t1}, 4, v{lane}")
    a(f"v_lshl_add_u32 v{t0}, v{t1}, 5, v{t0}")
    a(f"v_and_b32 v{t1}, 3, v{lane}")
    a(f"v_lshl_add_u32 v{t0}, v{t1}, 3, v{t0}")
    if ldsbase: a(f"v_add_u32 v{t0}, {ldsbase}, v{t0}")
    T = F + 36
    for b in range(9):
        st.lds(f"ds_read_b64_tr_b16 v[{T+4*b}:{T+4*b+1}], v{t0} offset:{b*128}", ("lnt", b))
        st.lds(f"ds_read_b64_tr_b16 v[{T+4*b+2}:{T+4*b+3}], v{t0} offset:{b*128+4*LS}", ("lnt", b))
    if after_xf: after_xf()
    a(f"v_mul_u32_u24 v{t1}, {XT_STR}, v{lane}")
    a(f"s_lshl_b32 s{sT}, s{sWG}, 4")
    for b in range(9):
        st.wait(lg=("lnt", b))
        st.vmem(f"buffer_store_dwordx4 v[{T+4*b}:{T+4*b+3}], v{t1}, s[{sXT}:{sXT+3}], s{sT} offen offset:128{sc}", "xtst")
        a(f"s_add_u32 s{sT}, s{sT}, {64*XT_STR}")
    L = st.a.label("nopad")
    a(f"s_cmp_lg_u32 s{sWG}, 0")
    a(f"s_cbranch_scc1 {L}")
    for i in range(4): a(f"v_mov_b32 v{F+i}, 0")
    a(f"s_mov_b32 s{sT}, 0")
    for b in range(9):
        a(f"buffer_store_dwordx4 v[{F}:{F+3}], v{t1}, s[{sXT}:{sXT+3}], s{sT} offen offset:96{sc}")
        a(f"buffer_store_dwordx4 v[{F}:{F+3}], v{t1}, s[{sXT}:{sXT+3}], s{sT} offen offset:112{sc}")
        a(f"s_add_u32 s{sT}, s{sT}, {64*XT_STR}")
    a("s_waitcnt vmcnt(0)")
    a(f"{L}:")

def k_ln(a):
    n = "ln_kernel"; a.begin(n); st = St(a)
    a(f"""
    s_cmp_ge_u32 s2, 256
    s_cbranch_scc1 L_ln_end
    s_load_dwordx2 s[4:5], s[0:1], {OFF['x']}
    s_load_dwordx2 s[16:17], s[0:1], {OFF['ws']}
    s_waitcnt lgkmcnt(0)
    """)
    srd(a, 4, 4, X_SZ)
    ws_srd(a, 8, 16, XF_OFF, XF_SZ); ws_srd(a, 12, 16, XT_OFF, XT_SZ)
    ln_wave(st, 2, 4, 8, 12, 0, 0, sc="")
    a("s_waitcnt vmcnt(0)")
    a("L_ln_end:")
    a.end(n, 256, 64, 8 * 1344, vgpr=136, accum=136)

def k_g1(a, RING=8, NW=5, XD=3, sc="", stamp=False):
    n = "g1_kernel"; a.begin(n); st = St(a)
    sWg, sWu, sXF, sHF, sW2 = 4, 8, 12, 16, 24
    sw = 20; sKS = 50; sXo = 30; sH = 32; sM = 38
    P2B = RING * 8192
    ACC = 0; ACC2 = 128; XV = 160; WR = 192; TMP = 216
    vTR = 232; vTR2 = 236; vW0 = 237; vW1 = 238; vW2 = 239; vX = 240; vH = 241; vH2 = 242; vl = 243
    t0, t1, t2, t3 = 244, 245, 246, 247
    a(f"""
    s_cmp_ge_u32 s2, 256
    s_cbranch_scc1 L_g1_end
    s_load_dwordx2 s[4:5], s[0:1], {OFF['wg']}
    s_load_dwordx2 s[8:9], s[0:1], {OFF['wu']}
    s_load_dwordx2 s[22:23], s[0:1], {OFF['ws']}
    v_lshrrev_b32 v{t0}, 6, v0
    v_and_b32 v{vl}, 63, v0
    s_and_b32 s40, s2, 7
    v_readfirstlane_b32 s{sw}, v{t0}
    s_lshr_b32 s41, s2, 3
    s_and_b32 s42, s41, 7
    s_lshr_b32 s43, s41, 3
    s_lshl_b32 s44, s40, 2
    s_add_u32 s44, s44, s43
    """)
    for k in range(18): a(f"s_mov_b32 s{sKS+k}, {k*294912}")
    a(f"""
    v_lshrrev_b32 v{t0}, 3, v{vl}
    v_and_b32 v{t1}, 3, v{t0}
    s_and_b32 s45, s{sw}, 1
    v_xor_b32 v{t1}, s45, v{t1}
    v_lshlrev_b32 v{t1}, 1, v{t1}
    v_and_b32 v{t2}, 7, v{vl}
    v_xor_b32 v{t1}, v{t1}, v{t2}
    v_mul_u32_u24 v{t0}, 9216, v{t0}
    v_lshl_add_u32 v{t0}, v{t1}, 4, v{t0}
    s_mul_i32 s46, s{sw}, {8*9216}
    s_lshl_b32 s47, s44, 7
    s_add_u32 s46, s46, s47
    v_add_u32 v{vW0}, s46, v{t0}
    v_add_u32 v{vW1}, {40*128}, v{vW0}
    s_lshl_b32 s{sM}, s{sw}, 11
    s_waitcnt lgkmcnt(0)
    """)
    srd(a, sWg, 4, W_SZ)
    a(f"""
    s_cmp_eq_u32 s45, 0
    s_cselect_b32 s{sW2}, s4, s8
    s_cselect_b32 s{sW2+1}, s5, s9
    s_mov_b32 s{sW2+2}, {W_SZ}
    s_mov_b32 s{sW2+3}, 0x00020000
    s_sub_u32 s8, s8, 1024
    s_subb_u32 s9, s9, 0
    """)
    srd(a, sWu, 8, W_SZ + 1024)
    def dma_stage(p, ks):
        slot = (ks + (18 if p else 0)) % RING
        v = vW1 if p else vW0
        return [f"s_add_u32 m0, s{sM}, {slot*8192}",
                lambda: st.vmem(f"buffer_load_dwordx4 v{v}, s[{sWg}:{sWg+3}], s{sKS+ks} offen lds", ("w", p, ks)),
                lambda: st.vmem(f"buffer_load_dwordx4 v{v}, s[{sWu}:{sWu+3}], s{sKS+ks} offen offset:1024 lds", ("w", p, ks))]
    def run(fs):
        for f in fs:
            if isinstance(f, str): a(f)
            else: f()
    def run_dma(fs):
        a(fs[0]); a("s_nop 0"); run(fs[1:])
    ws_srd(a, sXF, 22, XF_OFF, XF_SZ); ws_srd(a, sHF, 22, HF_OFF, HF_SZ)
    a(f"""
    s_lshl_b32 s46, s42, 2
    s_add_u32 s46, s46, s{sw}
    s_mul_i32 s{sXo}, s46, 73728
    v_lshlrev_b32 v{vX}, 4, v{vl}
    s_lshl_b32 s46, s46, 12
    v_add_u32 v{vH}, s46, v{vX}
    """)
    def xreg(ks, t):
        return f"a[{16*ks+4*t}:{16*ks+4*t+3}]" if ks < 16 else f"v[{XV+16*(ks-16)+4*t}:{XV+16*(ks-16)+4*t+3}]"
    def xload(ks):
        fs = []
        for t in range(4):
            fs.append(lambda t=t: st.vmem(f"buffer_load_dwordx4 {xreg(ks,t)}, v{vX}, s[{sXF}:{sXF+3}], s{sXo} offen offset:{t*1024}{sc}", ("x", ks, t)))
        fs.append(f"s_add_u32 s{sXo}, s{sXo}, 4096")
        return fs
    run_dma(dma_stage(0, 0))
    run(xload(0))
    run_dma(dma_stage(0, 1))
    for k in range(1, XD): run(xload(k))
    for k in range(2, RING - 1): run_dma(dma_stage(0, k))
    a(f"""
    v_lshrrev_b32 v{t0}, 1, v{vl}
    v_and_b32 v{t1}, 19, v{t0}
    v_bfe_u32 v{t2}, v{t0}, 2, 1
    v_lshl_add_u32 v{t1}, v{t2}, 3, v{t1}
    v_bfe_u32 v{t2}, v{t0}, 3, 1
    v_lshl_add_u32 v{t1}, v{t2}, 2, v{t1}
    v_mul_u32_u24 v{t1}, 9216, v{t1}
    v_and_b32 v{t2}, 1, v{vl}
    v_lshl_add_u32 v{t1}, v{t2}, 4, v{t1}
    s_lshr_b32 s46, s{sw}, 1
    s_mul_i32 s46, s46, 294912
    s_add_u32 s47, s40, 32
    s_lshl_b32 s47, s47, 7
    s_add_u32 s46, s46, s47
    s_lshl_b32 s47, s43, 5
    s_add_u32 s46, s46, s47
    v_add_u32 v{vW2}, s46, v{t1}
    s_lshl_b32 s39, s{sw}, 10
    """)
    def dma_p2(nn):
        return [f"s_add_u32 m0, s39, {P2B + nn*4096}",
                lambda: st.vmem(f"buffer_load_dwordx4 v{vW2}, s[{sW2}:{sW2+3}], s{sKS+2*nn} offen lds", ("w2", nn))]
    a(f"""
    v_lshrrev_b32 v{t0}, 4, v{vl}
    v_bfe_u32 v{t1}, v{vl}, 2, 2
    v_and_b32 v{t2}, 3, v{vl}
    v_lshlrev_b32 v{t2}, 3, v{t2}
    v_lshl_add_u32 v{t3}, v{t1}, 7, v{t2}
    v_lshl_add_u32 v{t3}, v{t0}, 11, v{t3}
    v_lshl_add_u32 v{vTR2}, v{t1}, 5, v{t2}
    v_and_b32 v{t2}, 1, v{t0}
    v_lshl_add_u32 v{vTR2}, v{t2}, 7, v{vTR2}
    v_xor_b32 v{t1}, v{t1}, v{t2}
    v_lshrrev_b32 v{t0}, 1, v{t0}
    v_lshl_add_u32 v{vTR2}, v{t0}, 9, v{vTR2}
    v_add_u32 v{vTR2}, {P2B}, v{vTR2}
    """)
    for t in range(4):
        a(f"v_xor_b32 v{t0}, {t}, v{t1}")
        a(f"v_lshl_add_u32 v{vTR+t}, v{t0}, 5, v{t3}")
    a(f"""
    s_lshl_b32 s{sH}, s44, 18
    s_add_u32 s{sH+1}, s{sH}, 131072
    s_add_u32 s{sH+2}, s{sH}, {80*131072}
    s_add_u32 s{sH+3}, s{sH}, {81*131072}
    s_add_u32 s46, s40, 32
    s_lshl_b32 s46, s46, 1
    s_lshr_b32 s47, s43, 1
    s_add_u32 s46, s46, s47
    s_lshl_b32 s{sH+4}, s46, 17
    s_and_b32 s46, s43, 1
    s_lshl_b32 s46, s46, 9
    v_lshrrev_b32 v{t0}, 5, v{vl}
    v_lshlrev_b32 v{t0}, 9, v{t0}
    v_add3_u32 v{vH2}, v{vH}, v{t0}, s46
    """)
    G = Gaps(st)
    frags = []
    for ks in range(18):
        for i in range(8): frags.append((0, ks, i))
    for ks in range(18):
        for i in range(2): frags.append((2, ks, i))
    for ks in range(18):
        for i in range(8): frags.append((1, ks, i))
    def rd(j):
        p, ks, i = frags[j]; w = WR + 4 * (j % NW)
        if p == 2:
            ad = vTR2; off = ks * 2048 + i * 1024; hs = 256
        else:
            slot = (ks + (18 if p else 0)) % RING
            ad = vTR + (i >> 1); off = slot * 8192 + (i & 1) * 1024; hs = 512
        return [lambda: st.lds(f"ds_read_b64_tr_b16 v[{w}:{w+1}], v{ad} offset:{off}", ("f", j)),
                lambda: st.lds(f"ds_read_b64_tr_b16 v[{w+2}:{w+3}], v{ad} offset:{off+hs}", ("f", j))]
    def accreg(p, i, t):
        if p == 2: return ACC2 + 16 * i + 4 * t
        return ACC + 16 * ((i >> 1) + 4 * (i & 1)) + 4 * t
    D = NW - 1
    first = {}
    for j, (p, ks, i) in enumerate(frags):
        w = WR + 4 * (j % NW)
        for t in range(4):
            c = accreg(p, i, t)
            src = "0" if ks == 0 else f"v[{c}:{c+3}]"
            m = G.mfma(f"v_mfma_f32_16x16x32_bf16 v[{c}:{c+3}], v[{w}:{w+3}], {xreg(ks,t)}, {src}")
            if t == 0:
                first.setdefault((p, ks), m)
                if p == 0 and i == 0:
                    G.add_pre(m, lambda j=j, ks=ks: st.wait(vm=("x", ks, 3 if ks else 0), lg=("f", j)))
                else:
                    G.add_pre(m, lambda j=j: st.wait(lg=("f", j)))
            elif p == 0 and i == 0 and ks == 0:
                G.add_pre(m, lambda t=t: st.wait(vm=("x", 0, t)))
    def bar(p, ks):
        def f():
            st.wait(vm=("w2", 8) if p == 2 else ("w", p, ks)); a("s_barrier")
        return f
    bar(0, 0)()
    for j in range(D): run(rd(j))
    barpos = {}
    for j in range(len(frags) - D):
        p, ks, i = frags[j + D]
        if i == 0 and (p != 2 or ks == 0):
            G.add_pre(4 * j, bar(p, ks), cost=2)
            barpos[(p, ks)] = 4 * j
        r = rd(j + D)
        G.add_gap(4 * j, r[0]); G.add_gap(4 * j + 1, r[1])
    p2n = 0
    for ks in range(18):
        m0 = first[(0, ks)]
        if ks + XD < 18: G.place(m0 + 2, xload(ks + XD), step=4)
        nx = ks + RING - 1
        mb = barpos[(0, ks + 1)] if ks < 17 else barpos[(2, 0)]
        if nx < 18:
            G.place(mb + 2, dma_stage(0, nx), step=1)
        else:
            G.place(mb + 2, dma_stage(1, nx - 18), step=1)
        if ks < 9:
            G.place(mb + 7, dma_p2(ks), step=1)
    for ks in range(18):
        nx = ks + RING - 1
        if nx < 18 :
            mb = barpos[(1, ks + 1)]
            G.place(mb + 2, dma_stage(1, nx), step=1)
    tcount = [0]
    def epi_main(p):
        fs = []
        for kk in range(2):
            for t in range(4):
                tmp = TMP + 4 * (tcount[0] % 4); tcount[0] += 1
                for hh in range(2):
                    g = ACC + 16 * (2 * kk + hh) + 4 * t; u = g + 64
                    for e in range(4): fs.append(f"v_mul_f32 v{g+e}, v{g+e}, v{u+e}")
                    fs.append(f"v_cvt_pk_bf16_f32 v{tmp+2*hh}, v{g}, v{g+1}")
                    fs.append(f"v_cvt_pk_bf16_f32 v{tmp+2*hh+1}, v{g+2}, v{g+3}")
                so = sH + 2 * p + kk
                fs.append(lambda tmp=tmp, so=so, t=t: st.vmem(f"buffer_store_dwordx4 v[{tmp}:{tmp+3}], v{vH}, s[{sHF}:{sHF+3}], s{so} offen offset:{t*1024}{sc}", ("h", p)))
        return fs
    def epi2():
        fs = []
        for tp in range(2):
            tmp = TMP + 4 * (tcount[0] % 4); tcount[0] += 1
            for hh in range(2):
                g = ACC2 + 4 * (2 * tp + hh); u = g + 16
                for e in range(4): fs.append(f"v_mul_f32 v{g+e}, v{g+e}, v{u+e}")
                fs.append(f"v_cvt_pk_bf16_f32 v{tmp+2*hh}, v{g}, v{g+1}")
                fs.append(f"v_cvt_pk_bf16_f32 v{tmp+2*hh+1}, v{g+2}, v{g+3}")
            fs.append("s_nop 1")
            fs.append(f"v_permlane32_swap_b32 v{tmp}, v{tmp+2}")
            fs.append(f"v_permlane32_swap_b32 v{tmp+1}, v{tmp+3}")
            fs.append("s_nop 0")
            fs.append(lambda tmp=tmp, tp=tp: st.vmem(f"buffer_store_dwordx4 v[{tmp}:{tmp+3}], v{vH2}, s[{sHF}:{sHF+3}], s{sH+4} offen offset:{tp*2048}{sc}", ("h", 2)))
        return fs
    last = G.place(first[(2, 0)] + 8, epi_main(0))
    assert last < first[(1, 0)] - 4, (last, first[(1, 0)])
    G.place(first[(1, 0)] + 8, epi2())
    G.emit()
    a("s_nop 7")
    run(epi_main(1))
    st.wait(vm="all")
    a("L_g1_end:")
    a.end(n, 256, 256, P2B + 36 * 1024, vgpr=512, accum=256)

def k_g2(a, R=8, sc="", use_y=True):
    n = "g2_kernel"; a.begin(n); st = St(a)
    sWd, sHF, sX, sO, sYT = 4, 8, 12, 16, 24
    sw = 20; sWo = 30; sHo = 31; sM = 32
    ACC = 0; WR = 80; NW = 4
    vD = 100
    vTR = 106; vHA = 108; vHB = 109; vl = 110; vXO = 111; vY = 112; vYR = 113; vPW = 114; vPR = 115
    t0, t1, t2, t3 = 116, 117, 118, 119
    XR = 120
    YB = R * 4 * 4096
    a(f"""
    s_and_b32 s40, s2, 7
    s_lshr_b32 s41, s2, 3
    s_cmp_ge_u32 s41, 30
    s_cbranch_scc1 L_g2_end
    s_mul_i32 s40, s40, 30
    s_add_u32 s40, s40, s41
    s_cmp_ge_u32 s40, 234
    s_cbranch_scc1 L_g2_end
    s_load_dwordx2 s[4:5], s[0:1], {OFF['wd']}
    s_load_dwordx2 s[12:13], s[0:1], {OFF['x']}
    s_load_dwordx2 s[16:17], s[0:1], {OFF['out']}
    s_load_dwordx2 s[22:23], s[0:1], {OFF['ws']}
    v_lshrrev_b32 v{t0}, 6, v0
    v_and_b32 v{vl}, 63, v0
    s_mul_i32 s42, s40, 7282
    v_readfirstlane_b32 s{sw}, v{t0}
    s_lshr_b32 s42, s42, 16
    s_mul_i32 s43, s42, 9
    s_sub_u32 s43, s40, s43
    """)
    a(f"""
    v_lshrrev_b32 v{t0}, 3, v{vl}
    v_bfe_u32 v{t1}, v{vl}, 4, 1
    v_lshlrev_b32 v{t1}, 2, v{t1}
    v_and_b32 v{t2}, 7, v{vl}
    v_xor_b32 v{t1}, v{t1}, v{t2}
    v_mul_u32_u24 v{t0}, 1152, v{t0}
    v_lshl_add_u32 v{t0}, v{t1}, 4, v{t0}
    s_mul_i32 s44, s{sw}, 36864
    s_lshl_b32 s45, s43, 7
    s_add_u32 s44, s44, s45
    v_add_u32 v{vD}, s44, v{t0}
    v_add_u32 v{vD+1}, {9216-1024}, v{vD}
    v_add_u32 v{vD+2}, {2*9216-2048}, v{vD}
    v_add_u32 v{vD+3}, {3*9216-3072}, v{vD}
    v_add_u32 v{vD+4}, {2*9216-1024}, v{vD}
    v_add_u32 v{vD+5}, {9216-2048}, v{vD}
    s_mul_i32 s{sM}, s{sw}, {R*4096}
    s_mul_i32 s44, s42, 5120
    s_lshl_b32 s45, s{sw}, 17
    s_add_u32 s44, s44, s45
    v_lshlrev_b32 v{t0}, 4, v{vl}
    v_add_u32 v{vHA}, s44, v{t0}
    s_cmp_eq_u32 s42, 25
    s_cselect_b32 s44, 0x40000000, 3072
    v_add_u32 v{vHB}, s44, v{vHA}
    s_mov_b32 s{sWo}, 0
    s_mov_b32 s{sHo}, 0
    s_waitcnt lgkmcnt(0)
    """)
    srd(a, sWd, 4, W_SZ); srd(a, sX, 12, X_SZ); srd(a, sO, 16, X_SZ)
    ws_srd(a, sHF, 22, HF_OFF, HF_SZ); ws_srd(a, sYT, 22, YT_OFF, YT_SZ)
    def run(fs):
        for f in fs:
            if isinstance(f, str): a(f)
            else: f()
    def hreg(nn, t):
        b = 20 * (nn % R) + 4 * t
        return f"a[{b}:{b+3}]"
    def loads(nn):
        fs = [f"s_add_u32 m0, s{sM}, {(nn % R)*4096}"]
        if nn: fs.append(f"s_add_u32 s{sWo}, s{sWo}, 147456")
        else: fs.append("s_nop 0")
        for b in range(4):
            v = vD + b
            if 16 <= nn < 20 and b in (1, 2): v = vD + 3 + b
            fs.append(lambda v=v, b=b: st.vmem(f"buffer_load_dwordx4 v{v}, s[{sWd}:{sWd+3}], s{sWo} offen offset:{b*1024} lds", ("w", nn)))
        if nn: fs.append(f"s_add_u32 s{sHo}, s{sHo}, 524288")
        for t in range(5):
            v = vHA if t < 3 else vHB; off = t * 1024 if t < 3 else (t - 3) * 1024
            fs.append(lambda v=v, off=off, t=t: st.vmem(f"buffer_load_dwordx4 {hreg(nn,t)}, v{v}, s[{sHF}:{sHF+3}], s{sHo} offen offset:{off}{sc}", ("h", nn)))
        return fs
    for nn in range(R - 1): run(loads(nn))
    a(f"""
    v_lshrrev_b32 v{t0}, 2, v{vl}
    v_lshlrev_b32 v{t0}, 7, v{t0}
    v_and_b32 v{t1}, 3, v{vl}
    v_lshl_add_u32 v{t0}, v{t1}, 4, v{t0}
    v_add_u32 v{t0}, s{sM}, v{t0}
    v_bfe_u32 v{t2}, v{vl}, 3, 1
    v_lshl_add_u32 v{vTR}, v{t2}, 6, v{t0}
    v_xor_b32 v{t2}, 1, v{t2}
    v_lshl_add_u32 v{vTR+1}, v{t2}, 6, v{t0}
    """)
    a(f"""
    s_mul_i32 s44, s42, 80
    s_lshr_b32 s45, s{sw}, 1
    s_lshl_b32 s46, s45, 4
    s_add_u32 s44, s44, s46
    s_mul_i32 s44, s44, 1152
    s_lshl_b32 s46, s43, 7
    s_add_u32 s44, s44, s46
    s_and_b32 s47, s{sw}, 1
    s_lshl_b32 s46, s47, 6
    s_add_u32 s44, s44, s46
    v_and_b32 v{t0}, 15, v{vl}
    v_mul_u32_u24 v{t0}, 1152, v{t0}
    v_lshrrev_b32 v{t1}, 4, v{vl}
    v_lshl_add_u32 v{t0}, v{t1}, 4, v{t0}
    v_add_u32 v{vXO}, s44, v{t0}
    s_mov_b32 s33, {32*1152}
    s_mov_b32 s34, {64*1152}
    v_bfe_u32 v{t2}, v{vl}, 2, 2
    v_lshl_add_u32 v{t2}, v{t1}, 3, v{t2}
    v_mul_u32_u24 v{t2}, 160, v{t2}
    v_and_b32 v{t3}, 3, v{vl}
    v_lshl_add_u32 v{t2}, v{t3}, 3, v{t2}
    s_mul_i32 s46, s47, {32*160}
    s_lshl_b32 s48, s45, 5
    s_add_u32 s46, s46, s48
    s_add_u32 s46, s46, {YB}
    v_add_u32 v{vYR}, s46, v{t2}
    s_mul_i32 s46, s{sw}, 20480
    v_lshlrev_b32 v{t0}, 4, v{vl}
    v_add_u32 v{vPW}, s46, v{t0}
    s_lshl_b32 s46, s45, 12
    s_lshl_b32 s48, s47, 11
    s_add_u32 s46, s46, s48
    v_add_u32 v{vPR}, s46, v{t0}
    s_lshl_b32 s35, s{sw}, 10
    s_lshl_b32 s36, s43, 18
    s_mul_i32 s46, s42, 160
    s_add_u32 s36, s36, s46
    """)
    def yloads():
        fs = []
        for it in range(3):
            fs.append(f"v_add_u32 v{t0}, {it*256}, v0")
            fs.append(f"v_mul_u32_u24 v{t1}, 6554, v{t0}")
            fs.append(f"v_lshrrev_b32 v{t1}, 16, v{t1}")
            fs.append(f"v_mul_u32_u24 v{t2}, {4096-160}, v{t1}")
            fs.append(f"v_lshl_add_u32 v{t2}, v{t0}, 4, v{t2}")
            if it == 2:
                fs.append(f"v_cmp_gt_u32 vcc, 640, v{t0}")
                fs.append(f"v_mov_b32 v{t3}, 0x40000000")
                fs.append("s_nop 0")
                fs.append(f"v_cndmask_b32 v{t2}, v{t3}, v{t2}, vcc")
            fs.append(f"s_add_u32 m0, s35, {YB + it*4096}")
            fs.append("s_nop 0")
            fs.append(lambda: st.vmem(f"buffer_load_dwordx4 v{t2}, s[{sYT}:{sYT+3}], s36 offen{sc} lds", "y"))
        return fs
    a(f"v_mov_b32 v{vY}, v0")
    G = Gaps(st)
    def rd(j):
        nn, ct = j >> 2, j & 3; w = WR + 4 * (j % NW)
        off = (nn % R) * 4096 + (ct & 1) * 8
        return [lambda: st.lds(f"ds_read_b64_tr_b16 v[{w}:{w+1}], v{vTR+(ct>>1)} offset:{off}", ("f", j)),
                lambda: st.lds(f"ds_read_b64_tr_b16 v[{w+2}:{w+3}], v{vTR+(ct>>1)} offset:{off+2048}", ("f", j))]
    D = 2
    for j in range(144):
        nn, ct = j >> 2, j & 3; w = WR + 4 * (j % NW)
        for t in range(5):
            c = ACC + 16 * t + 4 * ct
            src = "0" if nn == 0 else f"v[{c}:{c+3}]"
            m = G.mfma(f"v_mfma_f32_16x16x32_bf16 v[{c}:{c+3}], v[{w}:{w+3}], {hreg(nn,t)}, {src}")
            if t == 0:
                G.add_pre(m, lambda j=j, nn=nn, ct=ct: st.wait(vm=("h", nn) if ct == 0 else None, lg=("f", j)))
    st.wait(vm=("w", 0))
    for j in range(D): run(rd(j))
    for j in range(144 - D):
        nn, ct = (j + D) >> 2, (j + D) & 3
        r = rd(j + D)
        if ct == 0: G.add_gap(5 * j, lambda nn=nn: st.wait(vm=("w", nn)))
        G.add_gap(5 * j, r[0]); G.add_gap(5 * j + 1, r[1])
    for nn in range(36):
        if nn + R - 1 < 36: G.place(20 * nn + 1, loads(nn + R - 1), step=1)
    fs = [f.replace(", v0", f", v{vY}") if isinstance(f, str) else f for f in yloads()] if use_y else []
    for it in range(3):
        so = "0" if it == 0 else f"s{32+it}"
        fs.append(lambda it=it, so=so: st.vmem(f"buffer_load_dwordx4 v[{XR+4*it}:{XR+4*it+3}], v{vXO}, s[{sX}:{sX+3}], {so} offen", ("xr", it)))
    G.place(20 * (36 - R + 1) + 1, fs, step=0)
    G.emit()
    st.wait(vm="all")
    a("s_nop 4")
    a("s_barrier")
    for t in range(5):
        for ct in range(4):
            c = ACC + 16 * t + 4 * ct
            st.lds(f"ds_write_b128 v{vPW}, v[{c}:{c+3}] offset:{t*4096+ct*1024}", "pw")
    st.wait(lg="all")
    a("s_barrier")
    a("s_mov_b32 s44, 0xffff0000")
    for it in range(3):
        if it == 2:
            a(f"s_cmp_ge_u32 s{sw}, 2"); a("s_cbranch_scc1 L_g2_fin")
        B = 0
        for wv in range(4):
            for c in range(2):
                off = wv * 20480 + it * 8192 + c * 1024
                if off < 65536:
                    st.lds(f"ds_read_b128 v[{B+8*wv+4*c}:{B+8*wv+4*c+3}], v{vPR} offset:{off}", ("pr", it))
                else:
                    a(f"v_add_u32 v{t0}, 32768, v{vPR}")
                    st.lds(f"ds_read_b128 v[{B+8*wv+4*c}:{B+8*wv+4*c+3}], v{t0} offset:{off-32768}", ("pr", it))
        if use_y:
            st.lds(f"ds_read_b64_tr_b16 v[32:33], v{vYR} offset:{it*64}", ("pr", it))
            st.lds(f"ds_read_b64_tr_b16 v[34:35], v{vYR} offset:{it*64+640}", ("pr", it))
        for i in range(4):
            a(f"v_lshlrev_b32 v{40+2*i}, 16, v{XR+4*it+i}")
            a(f"v_and_b32 v{41+2*i}, s44, v{XR+4*it+i}")
        st.wait(lg=("pr", it))
        if use_y:
            for i in range(4):
                a(f"v_lshlrev_b32 v{48+2*i}, 16, v{32+i}")
                a(f"v_and_b32 v{49+2*i}, s44, v{32+i}")
            for i in range(4):
                a(f"v_pk_add_f32 v[{40+2*i}:{41+2*i}], v[{40+2*i}:{41+2*i}], v[{48+2*i}:{49+2*i}]")
        for i in range(4):
            a(f"v_pk_add_f32 v[{2*i}:{2*i+1}], v[{2*i}:{2*i+1}], v[{8+2*i}:{9+2*i}]")
            a(f"v_pk_add_f32 v[{16+2*i}:{17+2*i}], v[{16+2*i}:{17+2*i}], v[{24+2*i}:{25+2*i}]")
        for i in range(4):
            a(f"v_pk_add_f32 v[{2*i}:{2*i+1}], v[{2*i}:{2*i+1}], v[{40+2*i}:{41+2*i}]")
        for i in range(4):
            a(f"v_pk_add_f32 v[{2*i}:{2*i+1}], v[{2*i}:{2*i+1}], v[{16+2*i}:{17+2*i}]")
        o = 56 + 4 * it
        for i in range(4):
            a(f"v_cvt_pk_bf16_f32 v{o+i}, v{2*i}, v{2*i+1}")
        so = "0" if it == 0 else f"s{32+it}"
        a(f"buffer_store_dwordx4 v[{o}:{o+3}], v{vXO}, s[{sO}:{sO+3}], {so} offen")
    a("L_g2_fin:")
    a("s_waitcnt vmcnt(0)")
    a("L_g2_end:")
    a.end(n, 240, 256, YB + 3 * 4096, vgpr=512, accum=256)

def header():
    src = open(f"cdna_kernels/{NAME}.s.ref").read().split("\n") if len(sys.argv) > 2 else []
    return "\n".join(l for l in src if l.startswith(";") and "@launch" not in l)

if __name__ == "__main__":
    a = Asm()
    k_ln(a); k_g1(a); k_g2(a, use_y=False)
    open(sys.argv[1], "w").write(a.text())
```

```python
class St:
    def __init__(self, a):
        self.a = a
        self.vm = []; self.lg = []
        self.vm_done = 0; self.lg_done = 0
    def __call__(self, s): self.a(s)
    def vmem(self, s, tag=None):
        self.a(s); self.vm.append(tag)
    def lds(self, s, tag=None):
        self.a(s); self.lg.append(tag)
    def _need(self, lst, tags):
        if not isinstance(tags, (list, set)): tags = [tags]
        idx = -1
        for i, t in enumerate(lst):
            if t in tags: idx = i
        assert idx >= 0, f"tag {tags} never issued"
        return idx + 1
    def wait(self, vm=None, lg=None):
        parts = []
        if vm is not None:
            n = len(self.vm) if vm == "all" else self._need(self.vm, vm)
            if n > self.vm_done:
                c = min(len(self.vm) - n, 63)
                parts.append(f"vmcnt({c})"); self.vm_done = len(self.vm) - c
        if lg is not None:
            n = len(self.lg) if lg == "all" else self._need(self.lg, lg)
            if n > self.lg_done:
                c = min(len(self.lg) - n, 15)
                parts.append(f"lgkmcnt({c})"); self.lg_done = len(self.lg) - c
        if parts: self.a("s_waitcnt " + " ".join(parts))
    def outstanding_vm(self): return len(self.vm) - self.vm_done

class Gaps:
    def __init__(self, st):
        self.st = st; self.mf = []; self.pre = {}; self.gap = {}; self.cost = {}
    def mfma(self, s):
        self.mf.append(s); return len(self.mf) - 1
    def add_pre(self, m, f, cost=1):
        self.pre.setdefault(m, []).append(f)
        self.cost[m - 1] = self.cost.get(m - 1, 0) + cost
    def add_gap(self, m, f, cost=1):
        self.gap.setdefault(m, []).append(f)
        self.cost[m] = self.cost.get(m, 0) + cost
    def place(self, m, fs, cap=2, step=0, costs=None):
        for i, f in enumerate(fs):
            c = 1 if costs is None else costs[i]
            while self.cost.get(m, 0) + c > max(cap, c): m += 1
            self.add_gap(m, f, c)
            last = m
            m += step
        return last
    def emit(self):
        st = self.st
        n = len(self.mf)
        def run(f):
            if isinstance(f, str): st(f)
            else: f()
        for m in range(n):
            for f in self.pre.get(m, []): run(f)
            st(self.mf[m])
            for f in self.gap.get(m, []): run(f)
        rest = sorted(set([k for k in self.gap if k >= n] + [k for k in self.pre if k >= n]))
        for k in rest:
            for f in self.pre.get(k, []): run(f)
            for f in self.gap.get(k, []): run(f)
```

```python
from gen import *
import math
KR_STR = 4608; KR_SZ = 576 * KR_STR
KG_LDS = 16 * 544

def kgen_wave(st, sCh, sP, sKR, lane, sLds, R=8, sc=" sc1", sT=44):
    a = st
    nxt = [R]
    def al(n, align=2):
        while nxt[0] % align: nxt[0] += 1
        r = nxt[0]; nxt[0] += n; return r
    BF = al(32, 4); AF = al(32, 4); DD = al(16, 4); PK = al(8, 4)
    Z = al(36); W1 = al(4); W8 = al(4); W8c = al(4); WW = al(4); BB = al(4); T = al(8)
    raw = al(6); vW = al(1); vRd = al(1); vo1 = al(1); vo2 = al(1); dsk = al(1); t0 = al(1); t1 = al(1); t2 = al(1)
    a(f"v_lshlrev_b32 v{t0}, 2, v{lane}")
    a(f"s_lshl_b32 s{sT}, s{sCh}, 8")
    a(f"s_lshl_b32 s{sT+1}, s{sCh}, 1")
    a(f"v_mov_b32 v{t1}, 0")
    st.vmem(f"buffer_load_ushort v{raw+4}, v{t1}, s[{sP+16}:{sP+19}], s{sT+1} offen", "kg0")
    for i in range(4):
        st.vmem(f"buffer_load_dword v{raw+i}, v{t0}, s[{sP+4*i}:{sP+4*i+3}], s{sT} offen", ("kg", i))
    st.vmem(f"buffer_load_ushort v{raw+5}, v{t1}, s[{sP+20}:{sP+23}], s{sT+1} offen", "kg5")
    a(f"v_lshl_add_u32 v{vW}, v{lane}, 3, s{sLds}")
    a(f"v_and_b32 v{t0}, 15, v{lane}")
    a(f"v_lshrrev_b32 v{t1}, 4, v{lane}")
    a(f"v_mul_u32_u24 v{vRd}, 544, v{t0}")
    a(f"v_lshl_add_u32 v{vRd}, v{t1}, 4, v{vRd}")
    a(f"v_add_u32 v{vRd}, s{sLds}, v{vRd}")
    a(f"v_lshlrev_b32 v{t0}, 4, v{t0}")
    a(f"v_lshl_add_u32 v{vo2}, v{t1}, 8, v{t0}")
    a(f"v_sub_u32 v{vo2}, {2*(2040-128*12)}, v{vo2}")
    a(f"v_lshrrev_b32 v{t2}, 1, v{t1}")
    a(f"v_lshl_add_u32 v{t0}, v{t2}, 8, v{t0}")
    a(f"v_and_b32 v{t2}, 1, v{t1}")
    a(f"v_lshl_add_u32 v{t0}, v{t2}, 3, v{t0}")
    a(f"v_sub_u32 v{vo1}, {2*(2044-256)}, v{t0}")
    a(f"s_mul_i32 s{sT}, s{sCh}, {KR_STR}")
    a(f"s_mov_b32 s{sT+1}, 0xffff0000")
    a(f"s_mov_b32 s{sT+2}, {f32hex(math.log2(math.e))}")
    L2E = f"s{sT+2}"
    a(f"v_mov_b32 v{PK}, 0"); a(f"v_mov_b32 v{PK+1}, 0")
    a(f"v_lshlrev_b32 v{t0}, 3, v{lane}")
    a(f"v_add_u32 v{t0}, 4096, v{t0}")
    st.vmem(f"buffer_store_dwordx2 v[{PK}:{PK+1}], v{t0}, s[{sKR}:{sKR+3}], s{sT} offen{sc}", "kst")
    def expbf(dst, src):
        a(f"v_mul_f32 v{t1}, {L2E}, v{src}")
        a(f"v_fma_f32 v{t2}, v{src}, {L2E}, -v{t1}")
        a(f"v_exp_f32 v{t1}, v{t1}")
        lo = math.log2(math.e) - float(__import__('numpy').float32(math.log2(math.e)))
        a(f"v_fmamk_f32 v{t2}, v{src}, {f32hex(lo)}, v{t2}")
        a(f"v_mul_f32 v{t2}, {f32hex(math.log(2))}, v{t2}")
        a(f"v_fma_f32 v{t1}, v{t1}, v{t2}, v{t1}")
        a(f"v_cvt_pk_bf16_f32 v{dst}, v{t1}, v{t1}")
        a(f"v_lshlrev_b32 v{dst}, 16, v{dst}")
    dt = raw + 4
    st.wait(vm="kg0")
    a(f"v_lshlrev_b32 v{dt}, 16, v{dt}")
    expbf(dt, dt)
    st.wait(vm=("kg", 1))
    ar = [T, T + 1]; ai = [T + 2, T + 3]
    a(f"v_lshlrev_b32 v{ar[0]}, 16, v{raw}"); a(f"v_and_b32 v{ar[1]}, s{sT+1}, v{raw}")
    a(f"v_lshlrev_b32 v{ai[0]}, 16, v{raw+1}"); a(f"v_and_b32 v{ai[1]}, s{sT+1}, v{raw+1}")
    for m in range(2):
        expbf(ar[m], ar[m])
        a(f"v_mul_f32 v{ar[m]}, v{ar[m]}, v{dt}")
        a(f"v_mul_f32 v{ai[m]}, v{ai[m]}, v{dt}")
    for (p, w) in ((8, W8), (1, W1), (128, WW)):
        for m in range(2):
            x0, x1 = T + 4 + 2 * m, T + 5 + 2 * m
            a(f"v_mul_f32 v{x0}, {f32hex(-p*math.log2(math.e))}, v{ar[m]}")
            a(f"v_mul_f32 v{x1}, {f32hex(p/(2*math.pi))}, v{ai[m]}")
            a(f"v_exp_f32 v{x0}, v{x0}")
            a(f"v_fract_f32 v{x1}, v{x1}")
            a(f"v_cos_f32 v{w+2*m}, v{x1}")
            a(f"v_sin_f32 v{w+2*m+1}, v{x1}")
            a("s_nop 0")
            a(f"v_pk_mul_f32 v[{w+2*m}:{w+2*m+1}], v[{w+2*m}:{w+2*m+1}], v[{x0}:{x0+1}] op_sel_hi:[1,0]")
    for m in range(2):
        a(f"v_mov_b32 v{W8c+2*m}, v{W8+2*m}")
        a(f"v_sub_f32 v{W8c+2*m+1}, 0, v{W8+2*m+1}")
    st.wait(vm="kg5")
    a(f"v_add_f32 v{dt}, v{dt}, v{dt}")
    z = lambda r: Z + 4 * r
    a(f"v_lshlrev_b32 v{z(0)}, 16, v{raw+2}"); a(f"v_and_b32 v{z(0)+2}, s{sT+1}, v{raw+2}")
    a(f"v_lshlrev_b32 v{z(0)+1}, 16, v{raw+3}"); a(f"v_and_b32 v{z(0)+3}, s{sT+1}, v{raw+3}")
    for i in range(4): a(f"v_mul_f32 v{z(0)+i}, v{z(0)+i}, v{dt}")
    a(f"v_lshlrev_b32 v{dsk}, 16, v{raw+5}")
    a(f"v_cmp_eq_u32 vcc, 0, v{lane}")
    a(f"v_and_b32 v{t0}, 1, v{lane}")
    a("s_nop 0")
    a(f"v_cndmask_b32 v{dsk}, 0, v{dsk}, vcc")
    a(f"v_cmp_eq_u32 vcc, 0, v{t0}")
    def cmul(d, s, w):
        for m in range(2):
            a(f"v_pk_mul_f32 v[{T+2*m}:{T+2*m+1}], v[{s+2*m}:{s+2*m+1}], v[{w+2*m}:{w+2*m+1}] op_sel_hi:[0,1]")
        for m in range(2):
            a(f"v_pk_fma_f32 v[{d+2*m}:{d+2*m+1}], v[{s+2*m}:{s+2*m+1}], v[{w+2*m}:{w+2*m+1}], v[{T+2*m}:{T+2*m+1}] op_sel:[1,1,0] op_sel_hi:[1,0,1] neg_lo:[0,1,0]")
    pk = [0]
    def put(s, rows):
        p = PK + 2 * (pk[0] % 4); pk[0] += 1
        a(f"v_cvt_pk_bf16_f32 v{p}, v{s}, v{s+1}")
        a(f"v_cvt_pk_bf16_f32 v{p+1}, v{s+2}, v{s+3}")
        for r in rows: st.lds(f"ds_write_b64 v{vW}, v[{p}:{p+1}] offset:{r*544}", "kw")
    def getf(dst, tag):
        for s in range(8): st.lds(f"ds_read_b128 v[{dst+4*s}:{dst+4*s+3}], v{vRd} offset:{s*64}", tag)
    def mm(t):
        st.wait(lg=("A", t))
        for s in range(8):
            c = DD + 4 * t
            a(f"v_mfma_f32_16x16x32_bf16 v[{c}:{c+3}], v[{AF+4*s}:{AF+4*s+3}], v[{BF+4*s}:{BF+4*s+3}], " + ("0" if s == 0 else f"v[{c}:{c+3}]"))
    a(f"v_mov_b32 v{PK+6}, 0x00003f80"); a(f"v_mov_b32 v{PK+7}, 0x00003f80")
    st.lds(f"ds_write_b64 v{vW}, v[{PK+6}:{PK+7}]", "kw")
    put(W8c, [1])
    for b in range(2, 16):
        cmul(BB, W8c if b == 2 else BB, W8c); put(BB, [b])
    getf(BF, "B")
    put(z(0), [0])
    for r in range(1, 8):
        cmul(z(r), z(r - 1), W1); put(z(r), [r])
    cmul(z(8), z(0), W8)
    for r in range(9):
        cmul(z(r), z(r), WW)
        if r < 8: put(z(r), [8 + r])
    getf(AF, ("A", 0))
    for aa in range(2):
        for r in (0, 2, 4, 6, 8):
            cmul(z(r), z(r), WW)
            rows = {0: [0], 2: [1], 4: [2, 4], 6: [5], 8: [6]}[r]
            put(z(r), [8 * aa + x for x in rows])
    mm(0)
    getf(AF, ("A", 1))
    for aa in range(4):
        for i, r in enumerate((0, 4, 8)):
            cmul(z(r), z(r), WW); put(z(r), [4 * aa + i])
    mm(1)
    getf(AF, ("A", 2))
    for aa in range(8):
        for i, r in enumerate((0, 8)):
            cmul(z(r), z(r), WW); put(z(r), [4 * (aa & 3) + 2 * (aa >> 2) + i])
    mm(2)
    getf(AF, ("A", 3))
    O = Z
    while O % 4: O += 1
    d = DD
    a(f"v_add_f32 v{d}, v{d}, v{dsk}")
    a(f"v_cvt_pk_bf16_f32 v{O}, v{d+3}, v{d+2}"); a(f"v_cvt_pk_bf16_f32 v{O+1}, v{d+1}, v{d}")
    st.vmem(f"buffer_store_dwordx2 v[{O}:{O+1}], v{vo1}, s[{sKR}:{sKR+3}], s{sT} offen offset:512{sc}", "kst")
    d = DD + 4
    a(f"v_cvt_pk_bf16_f32 v{O+2}, v{d+2}, v{d+1}"); a(f"v_cvt_pk_bf16_f32 v{O+3}, v{d}, v{d}")
    st.vmem(f"buffer_store_dwordx2 v[{O+2}:{O+3}], v{vo1}, s[{sKR}:{sKR+3}], s{sT} offen{sc}", "kst")
    mm(3)
    d = DD + 8; o = O + 4
    a(f"v_cvt_pk_bf16_f32 v{o}, v{d+2}, v{d+2}"); a(f"v_cvt_pk_bf16_f32 v{o+1}, v{d+1}, v{d+1}")
    a(f"v_cvt_pk_bf16_f32 v{o+2}, v{d+1}, v{d}"); a(f"v_cvt_pk_bf16_f32 v{o+3}, v{d}, v{d}")
    st.vmem(f"buffer_store_dwordx4 v[{o}:{o+3}], v{vo2}, s[{sKR}:{sKR+3}], s{sT} offen offset:2048{sc}", "kst")
    a("s_nop 3")
    for hh in range(2):
        d = DD + 12 + 2 * hh; o = O + 8 + 4 * hh
        a(f"v_cndmask_b32 v{t0}, v{d+1}, v{d}, vcc")
        a(f"v_cvt_pk_bf16_f32 v{o}, v{d+1}, v{d+1}"); a(f"v_cvt_pk_bf16_f32 v{o+1}, v{d+1}, v{t0}")
        a(f"v_cvt_pk_bf16_f32 v{o+2}, v{d}, v{d}"); a(f"v_cvt_pk_bf16_f32 v{o+3}, v{d}, v{d}")
        st.vmem(f"buffer_store_dwordx4 v[{o}:{o+3}], v{vo2}, s[{sKR}:{sKR+3}], s{sT} offen offset:{1024*(1-hh)}{sc}", "kst")
    return nxt[0]

def k_pre(a):
    n = "pre_kernel"; a.begin(n)
    a(f"""
    s_cmp_ge_u32 s2, 256
    s_cbranch_scc1 L_pre_end
    s_load_dwordx2 s[16:17], s[0:1], {OFF['ws']}
    v_lshrrev_b32 v1, 6, v0
    v_and_b32 v0, 63, v0
    s_nop 0
    v_readfirstlane_b32 s20, v1
    s_cmp_lg_u32 s20, 0
    s_cbranch_scc1 L_pre_kg
    s_load_dwordx2 s[4:5], s[0:1], {OFF['x']}
    s_waitcnt lgkmcnt(0)
    """)
    st = St(a)
    srd(a, 4, 4, X_SZ)
    ws_srd(a, 8, 16, XF_OFF, XF_SZ); ws_srd(a, 12, 16, XT_OFF, XT_SZ)
    ln_wave(st, 2, 4, 8, 12, 0, 0, sc="")
    a("s_waitcnt vmcnt(0)")
    a("s_endpgm")
    a("L_pre_kg:")
    a(f"""
    s_sub_u32 s21, s20, 1
    s_lshl_b32 s22, s21, 8
    s_add_u32 s22, s22, s2
    s_cmp_ge_u32 s22, 576
    s_cbranch_scc1 L_pre_end
    """)
    for i, k in enumerate(("lar", "aim", "cre", "cim", "ldt", "dsk")):
        a(f"s_load_dwordx2 s[{60+4*i}:{61+4*i}], s[0:1], {OFF[k]}")
    a(f"s_mul_i32 s23, s21, {KG_LDS}")
    a(f"s_add_u32 s23, s23, {8*1344}")
    a("s_waitcnt lgkmcnt(0)")
    for i in range(6): srd(a, 60 + 4 * i, 60 + 4 * i, 576 * 256 if i < 4 else 1152)
    ws_srd(a, 8, 16, KR_OFF, KR_SZ)
    st = St(a)
    top = kgen_wave(st, 22, 60, 8, 0, 23, sc="")
    a("s_waitcnt vmcnt(0)")
    a("L_pre_end:")
    a.end(n, 256, 256, 8 * 1344 + 3 * KG_LDS, vgpr=192, accum=192)
    assert top <= 192, top

CV_XS = 4160; CV_KR = 4 * CV_XS; CV_LDS = CV_KR + 5120
def conv_loads(st, sCh, sXT, sKR, lane, sLds, R, sc, sT):
    a = st
    t0, t1, hd = R, R + 1, R + 4
    a(f"s_mul_i32 s{sT}, s{sCh}, {XT_STR}")
    a(f"s_mul_i32 s{sT+1}, s{sCh}, {KR_STR}")
    a(f"v_lshlrev_b32 v{t0}, 4, v{lane}")
    a(f"v_and_b32 v{t1}, 6, v{lane}")
    a(f"v_and_b32 v{R+2}, 1, v{lane}")
    a(f"v_lshl_add_u32 v{t1}, v{R+2}, 4, v{t1}")
    st.vmem(f"buffer_load_dwordx4 v[{hd}:{hd+3}], v{t1}, s[{sXT}:{sXT+3}], s{sT} offen offset:96{sc}", "cvh")
    a(f"s_add_u32 s{sT}, s{sT}, 128")
    for i in range(4):
        for c in range(4):
            a(f"s_add_u32 m0, s{sLds}, {c*CV_XS+32}")
            a(f"s_add_u32 s{sT+2}, s{sT}, {2*c}")
            st.vmem(f"buffer_load_dwordx4 v{t0}, s[{sXT}:{sXT+3}], s{sT+2} offen offset:{i*1024}{sc} lds", "cvx")
    a(f"s_add_u32 m0, s{sLds}, {CV_KR}")
    a("s_nop 0")
    for i in range(4):
        st.vmem(f"buffer_load_dwordx4 v{t0}, s[{sKR}:{sKR+3}], s{sT+1} offen offset:{i*1024}{sc} lds", "cvk")
    a(f"s_add_u32 m0, s{sLds}, {CV_KR+4096}")
    a(f"s_add_u32 s{sT+1}, s{sT+1}, 4096")
    st.vmem(f"buffer_load_dwordx4 v{t0}, s[{sKR}:{sKR+3}], s{sT+1} offen{sc} lds", "cvk")

def conv_compute(st, sCh, sYT, lane, sLds, R, sc, sT):
    a = st
    t0, t1, t2, hd = R, R + 1, R + 2, R + 4
    vA, vB, vY = R + 8, R + 9, R + 10
    ACC = R + 12; AF = ACC + 32; BF = AF + 64
    a(f"v_bfe_u32 v{t0}, v{lane}, 1, 2")
    a(f"v_mul_u32_u24 v{t0}, {CV_XS}, v{t0}")
    a(f"v_and_b32 v{t1}, 1, v{lane}")
    a(f"v_lshl_add_u32 v{t0}, v{t1}, 4, v{t0}")
    a(f"v_add_u32 v{t0}, s{sLds}, v{t0}")
    a(f"v_and_b32 v{t1}, 15, v{lane}")
    a(f"v_lshrrev_b32 v{t2}, 4, v{lane}")
    a(f"v_lshlrev_b32 v{vY}, 5, v{t1}")
    a(f"v_lshlrev_b32 v{vB}, 4, v{t2}")
    a(f"v_sub_u32 v{vB}, v{vB}, v{vY}")
    a(f"v_lshl_add_u32 v{vY}, v{t2}, 3, v{vY}")
    a(f"s_add_u32 s{sT}, s{sLds}, {CV_KR+480}")
    a(f"v_add_u32 v{vB}, s{sT}, v{vB}")
    a(f"v_add_u32 v{t1}, 1, v{t1}")
    a(f"v_and_b32 v{vA}, 3, v{t1}")
    a(f"v_mul_u32_u24 v{vA}, {CV_XS}, v{vA}")
    a(f"v_lshrrev_b32 v{t1}, 2, v{t1}")
    a(f"v_lshl_add_u32 v{vA}, v{t1}, 3, v{vA}")
    a(f"v_lshl_add_u32 v{vA}, v{t2}, 4, v{vA}")
    a(f"v_add_u32 v{vA}, s{sLds}, v{vA}")
    a(f"s_lshl_b32 s{sT}, s{sCh}, 12")
    st.wait(vm="cvh")
    st.lds(f"ds_write_b128 v{t0}, v[{hd}:{hd+3}]", "cvw")
    st.wait(vm="cvk")
    def rdA(rho, S):
        r = AF + 32 * (rho & 1) + 4 * S; off = 64 * (8 * S + rho)
        return [lambda: st.lds(f"ds_read_b64 v[{r}:{r+1}], v{vA} offset:{off}", ("A", rho, S)),
                lambda: st.lds(f"ds_read_b64 v[{r+2}:{r+3}], v{vA} offset:{off+8}", ("A", rho, S))]
    def rdB(rho, u):
        r = BF + 32 * (rho & 1) + 4 * u; off = 64 * (rho - 8 * u + 56)
        return [lambda: st.lds(f"ds_read_b128 v[{r}:{r+3}], v{vB} offset:{off}", ("B", rho, u))]
    pairs = sorted([(S, u) for S in range(8) for u in range(8 - S)], key=lambda p: (max(p), p))
    def reads(rho):
        fs = []
        for i in range(8): fs += rdA(rho, i) + rdB(rho, i)
        return fs
    G = Gaps(st)
    seen = set()
    for rho in range(8):
        for (S, u) in pairs:
            T = S + u; c = ACC + 4 * T
            src = f"v[{c}:{c+3}]" if T in seen else "0"
            seen.add(T)
            ra = AF + 32 * (rho & 1) + 4 * S; rb = BF + 32 * (rho & 1) + 4 * u
            m = G.mfma(f"v_mfma_f32_16x16x32_bf16 v[{c}:{c+3}], v[{ra}:{ra+3}], v[{rb}:{rb+3}], {src}")
            G.add_pre(m, lambda rho=rho, S=S, u=u: st.wait(lg=[("A", rho, S), ("B", rho, u)]), cost=0)
    for f in reads(0)[:12]: f()
    G.place(0, reads(0)[12:], cap=2)
    for rho in range(7):
        G.place(36 * rho + 8, reads(rho + 1), cap=1)
    G.emit()
    a("s_nop 7")
    for T in range(8):
        c = ACC + 4 * T; o = AF + 2 * T
        a(f"v_cvt_pk_bf16_f32 v{o}, v{c}, v{c+1}"); a(f"v_cvt_pk_bf16_f32 v{o+1}, v{c+2}, v{c+3}")
        st.vmem(f"buffer_store_dwordx2 v[{o}:{o+1}], v{vY}, s[{sYT}:{sYT+3}], s{sT} offen offset:{T*512}{sc}", "yst")
    return BF + 64

def k_conv(a):
    n = "conv_kernel"; a.begin(n); st = St(a)
    a(f"""
    s_cmp_ge_u32 s2, 576
    s_cbranch_scc1 L_cv_end
    s_load_dwordx2 s[16:17], s[0:1], {OFF['ws']}
    s_mov_b32 s23, 0
    s_waitcnt lgkmcnt(0)
    """)
    ws_srd(a, 4, 16, XT_OFF, XT_SZ); ws_srd(a, 8, 16, KR_OFF, KR_SZ); ws_srd(a, 12, 16, YT_OFF, YT_SZ)
    conv_loads(st, 2, 4, 8, 0, 23, 4, "", 40)
    top = conv_compute(st, 2, 12, 0, 23, 4, "", 40)
    a("s_waitcnt vmcnt(0)")
    a("L_cv_end:")
    a.end(n, 576, 64, CV_LDS, vgpr=192, accum=192)
    assert top <= 192, top

if __name__ == "__main__":
    a = Asm()
    k_pre(a); k_g1(a); k_conv(a); k_g2(a)
    open(sys.argv[1], "w").write(a.text(header()))
```

```python
import sys
sys.path.insert(0, "work")
from asmlib import *
from sched import *

NAME = "parallel_sum__ssm_conv_s4d__glu_gated_bilinear__prompt"
XF_OFF = 0;          XF_SZ = 32 * 73728
XT_OFF = 0x300000;   XT_STR = 4224; XT_SZ = 576 * XT_STR
YT_OFF = 0x600000;   YT_SZ = 576 * 4096
KR_OFF = 0x900000
HF_OFF = 0x1000000;  HF_SZ = 144 * 131072
X_SZ = 2048 * 1152; W_SZ = 576 * 9216

def ws_srd(a, d, wsp, off, size):
    a(f"s_add_u32 s{d}, s{wsp}, {off}")
    a(f"s_addc_u32 s{d+1}, s{wsp+1}, 0")
    a(f"s_mov_b32 s{d+2}, {size}")
    a(f"s_mov_b32 s{d+3}, 0x00020000")

STAMP = [False]
ST_OFF = 0x3400000
def stamp(a, i):
    if STAMP[0]: a(f"s_memrealtime s[{84+2*i}:{85+2*i}]")
def stamp_flush(a, kidx, n, swave=None):
    if not STAMP[0]: return
    a("s_waitcnt vmcnt(0) lgkmcnt(0)")
    a(f"s_load_dwordx2 s[76:77], s[0:1], {OFF['ws']}")
    a("s_waitcnt lgkmcnt(0)")
    ws_srd(a, 76, 76, ST_OFF, 1 << 20)
    a(f"s_lshl_b32 s80, s2, 2")
    if swave is not None: a(f"s_add_u32 s80, s80, s{swave}")
    a(f"s_add_u32 s80, s80, {kidx*4096}")
    a(f"s_lshl_b32 s80, s80, 5")
    for i in range(8): a(f"v_mov_b32 v{i}, s{84+2*i}" if i < n else f"v_mov_b32 v{i}, 0")
    a("v_mov_b32 v8, 0")
    a("s_nop 4")
    a("buffer_store_dwordx4 v[0:3], v8, s[76:79], s80 offen")
    a("buffer_store_dwordx4 v[4:7], v8, s[76:79], s80 offen offset:16")
    a("s_waitcnt vmcnt(0)")

def f32hex(x):
    import struct
    return hex(struct.unpack("<I", struct.pack("<f", x))[0])

def ln_wave(st, sWG, sX, sXF, sXT, lane, ldsbase, R=8, sc=" sc1", sT=40, after_xf=None, after_ld=None):
    a = st
    raw = R + 8; F = R + 48
    t0, t1, t2, t3, t4, t5 = R, R + 1, R + 2, R + 3, R + 4, R + 5
    acc = R + 44
    LS = 1344
    a(f"v_lshrrev_b32 v{t0}, 3, v{lane}")
    a(f"v_and_b32 v{t1}, 7, v{lane}")
    a(f"s_mul_i32 s{sT}, s{sWG}, {8*1152}")
    a(f"v_mul_u32_u24 v{t2}, 1152, v{t0}")
    a(f"v_lshl_add_u32 v{t2}, v{t1}, 4, v{t2}")
    for g in range(9):
        st.vmem(f"buffer_load_dwordx4 v[{raw+4*g}:{raw+4*g+3}], v{t2}, s[{sX}:{sX+3}], s{sT} offen offset:{g*128}", ("ln", g))
    if after_ld: after_ld()
    a(f"v_mul_u32_u24 v{t2}, {LS}, v{t0}")
    a(f"v_lshl_add_u32 v{t2}, v{t1}, 4, v{t2}")
    a(f"v_mul_u32_u24 v{t3}, {LS}, v{t1}")
    a(f"v_lshl_add_u32 v{t3}, v{t0}, 4, v{t3}")
    if ldsbase:
        a(f"v_add_u32 v{t2}, {ldsbase}, v{t2}")
        a(f"v_add_u32 v{t3}, {ldsbase}, v{t3}")
    a(f"v_lshrrev_b32 v{t4}, 2, v{t0}")
    a(f"v_lshlrev_b32 v{t4}, 12, v{t4}")
    a(f"v_and_b32 v{t5}, 3, v{t0}")
    a(f"v_lshl_add_u32 v{t4}, v{t5}, 8, v{t4}")
    a(f"v_lshl_add_u32 v{t4}, v{t1}, 4, v{t4}")
    a(f"s_lshr_b32 s{sT}, s{sWG}, 3")
    a(f"s_mul_i32 s{sT}, s{sT}, 73728")
    a(f"s_bfe_u32 s{sT+1}, s{sWG}, 0x20001")
    a(f"s_lshl_b32 s{sT+1}, s{sT+1}, 10")
    a(f"s_add_u32 s{sT}, s{sT}, s{sT+1}")
    a(f"s_and_b32 s{sT+1}, s{sWG}, 1")
    a(f"s_lshl_b32 s{sT+1}, s{sT+1}, 7")
    a(f"s_add_u32 s{sT}, s{sT}, s{sT+1}")
    a(f"s_mov_b32 s{sT+2}, 0xffff0000")
    for g in range(9):
        st.wait(vm=("ln", g))
        for i in range(4):
            r = raw + 4 * g + i; f = F + 8 * g + 2 * i
            a(f"v_lshlrev_b32 v{f}, 16, v{r}")
            a(f"v_and_b32 v{f+1}, s{sT+2}, v{r}")
        for i in range(4):
            f = F + 8 * g + 2 * i; ac = acc + 2 * (i & 1)
            if g == 0 and i < 2:
                continue
            if g == 0:
                a(f"v_pk_add_f32 v[{ac}:{ac+1}], v[{f-4}:{f-3}], v[{f}:{f+1}]")
            else:
                a(f"v_pk_add_f32 v[{ac}:{ac+1}], v[{ac}:{ac+1}], v[{f}:{f+1}]")
    def red():
        a(f"v_pk_add_f32 v[{acc}:{acc+1}], v[{acc}:{acc+1}], v[{acc+2}:{acc+3}]")
        a("s_nop 0")
        a(f"v_add_f32 v{acc}, v{acc}, v{acc+1}")
        for d in ("quad_perm:[1,0,3,2]", "quad_perm:[2,3,0,1]", "row_half_mirror"):
            a("s_nop 1")
            a(f"v_add_f32_dpp v{acc}, v{acc}, v{acc} {d} row_mask:0xf bank_mask:0xf")
        a(f"v_mul_f32 v{acc}, {f32hex(1/576)}, v{acc}")
    red()
    mean = raw; mb = raw + 1; rr = raw + 2; cc = raw + 3
    a(f"v_mov_b32 v{mean}, v{acc}")
    a(f"v_cvt_pk_bf16_f32 v{mb}, v{acc}, v{acc}")
    for k in range(36):
        f = F + 2 * k
        a(f"v_pk_add_f32 v[{f}:{f+1}], v[{f}:{f+1}], v[{mean}:{mean+1}] op_sel_hi:[1,0] neg_lo:[0,1] neg_hi:[0,1]")
    for k in range(36):
        f = F + 2 * k; ac = acc + 2 * (k & 1)
        if k < 2: a(f"v_pk_mul_f32 v[{ac}:{ac+1}], v[{f}:{f+1}], v[{f}:{f+1}]")
        else: a(f"v_pk_fma_f32 v[{ac}:{ac+1}], v[{f}:{f+1}], v[{f}:{f+1}], v[{ac}:{ac+1}]")
    red()
    a(f"v_cvt_pk_bf16_f32 v{acc}, v{acc}, v{acc}")
    a(f"v_lshlrev_b32 v{mb}, 16, v{mb}")
    a(f"v_lshlrev_b32 v{acc}, 16, v{acc}")
    a(f"v_add_f32 v{acc}, {f32hex(1e-5)}, v{acc}")
    a(f"v_cvt_pk_bf16_f32 v{acc}, v{acc}, v{acc}")
    a(f"v_sub_f32 v{mb}, v{mean}, v{mb}")
    a(f"v_lshlrev_b32 v{acc}, 16, v{acc}")
    a(f"v_sqrt_f32 v{acc}, v{acc}")
    a("s_nop 0")
    a(f"v_cvt_pk_bf16_f32 v{acc}, v{acc}, v{acc}")
    a(f"v_lshlrev_b32 v{acc}, 16, v{acc}")
    a(f"v_rcp_f32 v{rr}, v{acc}")
    a("s_nop 0")
    a(f"v_mul_f32 v{cc}, v{mb}, v{rr}")
    P = raw + 4
    for g in range(9):
        p = P + 4 * (g & 3)
        for i in range(4):
            f = F + 8 * g + 2 * i
            a(f"v_pk_fma_f32 v[{f}:{f+1}], v[{f}:{f+1}], v[{rr}:{rr+1}], v[{rr}:{rr+1}] op_sel:[0,0,1] op_sel_hi:[1,0,1]")
        for i in range(4):
            f = F + 8 * g + 2 * i
            a(f"v_cvt_pk_bf16_f32 v{p+i}, v{f}, v{f+1}")
        st.lds(f"ds_write_b128 v{t2}, v[{p}:{p+3}] offset:{g*128}", ("lnw", g))
    for g in range(9):
        st.lds(f"ds_read_b128 v[{F+4*g}:{F+4*g+3}], v{t3} offset:{g*128}", ("lnr", g))
    for g in range(9):
        st.wait(lg=("lnr", g))
        st.vmem(f"buffer_store_dwordx4 v[{F+4*g}:{F+4*g+3}], v{t4}, s[{sXF}:{sXF+3}], s{sT} offen{sc}", "xfst")
        if g < 8: a(f"s_add_u32 s{sT}, s{sT}, 8192")
    if sXT is None: return
    a(f"v_bfe_u32 v{t0}, v{lane}, 2, 2")
    a(f"v_mul_u32_u24 v{t0}, {LS}, v{t0}")
    a(f"v_lshrrev_b32 v{t1}, 4, v{lane}")
    a(f"v_lshl_add_u32 v{t0}, v{t1}, 5, v{t0}")
    a(f"v_and_b32 v{t1}, 3, v{lane}")
    a(f"v_lshl_add_u32 v{t0}, v{t1}, 3, v{t0}")
    if ldsbase: a(f"v_add_u32 v{t0}, {ldsbase}, v{t0}")
    T = F + 36
    for b in range(9):
        st.lds(f"ds_read_b64_tr_b16 v[{T+4*b}:{T+4*b+1}], v{t0} offset:{b*128}", ("lnt", b))
        st.lds(f"ds_read_b64_tr_b16 v[{T+4*b+2}:{T+4*b+3}], v{t0} offset:{b*128+4*LS}", ("lnt", b))
    if after_xf: after_xf()
    a(f"v_mul_u32_u24 v{t1}, {XT_STR}, v{lane}")
    a(f"s_lshl_b32 s{sT}, s{sWG}, 4")
    for b in range(9):
        st.wait(lg=("lnt", b))
        st.vmem(f"buffer_store_dwordx4 v[{T+4*b}:{T+4*b+3}], v{t1}, s[{sXT}:{sXT+3}], s{sT} offen offset:128{sc}", "xtst")
        a(f"s_add_u32 s{sT}, s{sT}, {64*XT_STR}")
    L = st.a.label("nopad")
    a(f"s_cmp_lg_u32 s{sWG}, 0")
    a(f"s_cbranch_scc1 {L}")
    for i in range(4): a(f"v_mov_b32 v{F+i}, 0")
    a(f"s_mov_b32 s{sT}, 0")
    for b in range(9):
        a(f"buffer_store_dwordx4 v[{F}:{F+3}], v{t1}, s[{sXT}:{sXT+3}], s{sT} offen offset:96{sc}")
        a(f"buffer_store_dwordx4 v[{F}:{F+3}], v{t1}, s[{sXT}:{sXT+3}], s{sT} offen offset:112{sc}")
        a(f"s_add_u32 s{sT}, s{sT}, {64*XT_STR}")
    a("s_waitcnt vmcnt(0)")
    a(f"{L}:")

def k_ln(a):
    n = "ln_kernel"; a.begin(n); st = St(a)
    a(f"""
    s_cmp_ge_u32 s2, 256
    s_cbranch_scc1 L_ln_end
    s_load_dwordx2 s[4:5], s[0:1], {OFF['x']}
    s_load_dwordx2 s[16:17], s[0:1], {OFF['ws']}
    s_waitcnt lgkmcnt(0)
    """)
    srd(a, 4, 4, X_SZ)
    ws_srd(a, 8, 16, XF_OFF, XF_SZ); ws_srd(a, 12, 16, XT_OFF, XT_SZ)
    ln_wave(st, 2, 4, 8, 12, 0, 0, sc="")
    a("s_waitcnt vmcnt(0)")
    a("L_ln_end:")
    a.end(n, 256, 64, 8 * 1344, vgpr=136, accum=136)

def k_g1(a, RING=8, NW=5, XD=3, sc="", early=False, ttb=3, late1=False, nox=False, xstep=4):
    n = "g1_kernel"; a.begin(n); st = St(a); stamp(a, 0)
    sWg, sWu, sXF, sHF, sW2 = 4, 8, 12, 16, 24
    sw = 20; sKS = 50; sXo = 30; sH = 32; sM = 38
    P2B = RING * 8192
    ACC = 0; ACC2 = 128; XV = 160; WR = 192; TMP = 216
    vTR = 232; vTR2 = 236; vW0 = 237; vW1 = 238; vW2 = 239; vX = 240; vH = 241; vH2 = 242; vl = 243
    t0, t1, t2, t3 = 244, 245, 246, 247
    a(f"""
    s_cmp_ge_u32 s2, 256
    s_cbranch_scc1 L_g1_end
    s_load_dwordx2 s[4:5], s[0:1], {OFF['wg']}
    s_load_dwordx2 s[8:9], s[0:1], {OFF['wu']}
    s_load_dwordx2 s[22:23], s[0:1], {OFF['ws']}
    v_lshrrev_b32 v{t0}, 6, v0
    v_and_b32 v{vl}, 63, v0
    s_and_b32 s40, s2, 7
    v_readfirstlane_b32 s{sw}, v{t0}
    s_lshr_b32 s41, s2, 3
    s_and_b32 s42, s41, 7
    s_lshr_b32 s43, s41, 3
    s_lshl_b32 s44, s40, 2
    s_add_u32 s44, s44, s43
    """)
    if ttb != 3:
        a(f"s_and_b32 s42, s41, {(1<<ttb)-1}")
        a(f"s_and_b32 s45, s40, {(1<<(3-ttb))-1}")
        a(f"s_lshl_b32 s45, s45, {ttb}")
        a(f"s_add_u32 s42, s42, s45")
        a(f"s_lshr_b32 s44, s41, {ttb}")
        a(f"s_lshr_b32 s45, s40, {3-ttb}")
        a(f"s_lshl_b32 s45, s45, {5-ttb}")
        a(f"s_add_u32 s44, s44, s45")
        a("s_lshr_b32 s40, s44, 2"); a("s_and_b32 s43, s44, 3")
    for k in range(18): a(f"s_mov_b32 s{sKS+k}, {k*294912}")
    a(f"""
    v_lshrrev_b32 v{t0}, 3, v{vl}
    v_and_b32 v{t1}, 3, v{t0}
    s_and_b32 s45, s{sw}, 1
    v_xor_b32 v{t1}, s45, v{t1}
    v_lshlrev_b32 v{t1}, 1, v{t1}
    v_and_b32 v{t2}, 7, v{vl}
    v_xor_b32 v{t1}, v{t1}, v{t2}
    v_mul_u32_u24 v{t0}, 9216, v{t0}
    v_lshl_add_u32 v{t0}, v{t1}, 4, v{t0}
    s_mul_i32 s46, s{sw}, {8*9216}
    s_lshl_b32 s47, s44, 7
    s_add_u32 s46, s46, s47
    v_add_u32 v{vW0}, s46, v{t0}
    v_add_u32 v{vW1}, {40*128}, v{vW0}
    s_lshl_b32 s{sM}, s{sw}, 11
    s_waitcnt lgkmcnt(0)
    """)
    srd(a, sWg, 4, W_SZ)
    a(f"""
    s_cmp_eq_u32 s45, 0
    s_cselect_b32 s{sW2}, s4, s8
    s_cselect_b32 s{sW2+1}, s5, s9
    s_mov_b32 s{sW2+2}, {W_SZ}
    s_mov_b32 s{sW2+3}, 0x00020000
    s_sub_u32 s8, s8, 1024
    s_subb_u32 s9, s9, 0
    """)
    srd(a, sWu, 8, W_SZ + 1024)
    def dma_stage(p, ks):
        slot = (ks + (18 if p else 0)) % RING
        v = vW1 if p else vW0
        return [f"s_add_u32 m0, s{sM}, {slot*8192}",
                lambda: st.vmem(f"buffer_load_dwordx4 v{v}, s[{sWg}:{sWg+3}], s{sKS+ks} offen lds", ("w", p, ks)),
                lambda: st.vmem(f"buffer_load_dwordx4 v{v}, s[{sWu}:{sWu+3}], s{sKS+ks} offen offset:1024 lds", ("w", p, ks))]
    def run(fs):
        for f in fs:
            if isinstance(f, str): a(f)
            else: f()
    def run_dma(fs):
        a(fs[0]); a("s_nop 0"); run(fs[1:])
    ws_srd(a, sXF, 22, XF_OFF, 0 if nox else XF_SZ); ws_srd(a, sHF, 22, HF_OFF, HF_SZ)
    a(f"""
    s_lshl_b32 s46, s42, 2
    s_add_u32 s46, s46, s{sw}
    s_mul_i32 s{sXo}, s46, 73728
    v_lshlrev_b32 v{vX}, 4, v{vl}
    s_lshl_b32 s46, s46, 12
    v_add_u32 v{vH}, s46, v{vX}
    """)
    def xreg(ks, t):
        return f"a[{16*ks+4*t}:{16*ks+4*t+3}]" if ks < 16 else f"v[{XV+16*(ks-16)+4*t}:{XV+16*(ks-16)+4*t+3}]"
    def xload(ks):
        fs = []
        for t in range(4):
            fs.append(lambda t=t: st.vmem(f"buffer_load_dwordx4 {xreg(ks,t)}, v{vX}, s[{sXF}:{sXF+3}], s{sXo} offen offset:{t*1024}{sc}", ("x", ks, t)))
        fs.append(f"s_add_u32 s{sXo}, s{sXo}, 4096")
        return fs
    if not early:
        run_dma(dma_stage(0, 0))
        run(xload(0))
        run_dma(dma_stage(0, 1))
        for k in range(1, XD): run(xload(k))
        for k in range(2, RING - 1): run_dma(dma_stage(0, k))
    else:
        for k in range(RING - 1): run_dma(dma_stage(0, k))
    a(f"""
    v_lshrrev_b32 v{t0}, 1, v{vl}
    v_and_b32 v{t1}, 19, v{t0}
    v_bfe_u32 v{t2}, v{t0}, 2, 1
    v_lshl_add_u32 v{t1}, v{t2}, 3, v{t1}
    v_bfe_u32 v{t2}, v{t0}, 3, 1
    v_lshl_add_u32 v{t1}, v{t2}, 2, v{t1}
    v_mul_u32_u24 v{t1}, 9216, v{t1}
    v_and_b32 v{t2}, 1, v{vl}
    v_lshl_add_u32 v{t1}, v{t2}, 4, v{t1}
    s_lshr_b32 s46, s{sw}, 1
    s_mul_i32 s46, s46, 294912
    s_add_u32 s47, s40, 32
    s_lshl_b32 s47, s47, 7
    s_add_u32 s46, s46, s47
    s_lshl_b32 s47, s43, 5
    s_add_u32 s46, s46, s47
    v_add_u32 v{vW2}, s46, v{t1}
    s_lshl_b32 s39, s{sw}, 10
    """)
    def dma_p2(nn):
        return [f"s_add_u32 m0, s39, {P2B + nn*4096}",
                lambda: st.vmem(f"buffer_load_dwordx4 v{vW2}, s[{sW2}:{sW2+3}], s{sKS+2*nn} offen lds", ("w2", nn))]
    if early:
        for k in range(9): run_dma(dma_p2(k))
    a(f"""
    v_lshrrev_b32 v{t0}, 4, v{vl}
    v_bfe_u32 v{t1}, v{vl}, 2, 2
    v_and_b32 v{t2}, 3, v{vl}
    v_lshlrev_b32 v{t2}, 3, v{t2}
    v_lshl_add_u32 v{t3}, v{t1}, 7, v{t2}
    v_lshl_add_u32 v{t3}, v{t0}, 11, v{t3}
    v_lshl_add_u32 v{vTR2}, v{t1}, 5, v{t2}
    v_and_b32 v{t2}, 1, v{t0}
    v_lshl_add_u32 v{vTR2}, v{t2}, 7, v{vTR2}
    v_xor_b32 v{t1}, v{t1}, v{t2}
    v_lshrrev_b32 v{t0}, 1, v{t0}
    v_lshl_add_u32 v{vTR2}, v{t0}, 9, v{vTR2}
    v_add_u32 v{vTR2}, {P2B}, v{vTR2}
    """)
    for t in range(4):
        a(f"v_xor_b32 v{t0}, {t}, v{t1}")
        a(f"v_lshl_add_u32 v{vTR+t}, v{t0}, 5, v{t3}")
    a(f"""
    s_lshl_b32 s{sH}, s44, 18
    s_add_u32 s{sH+1}, s{sH}, 131072
    s_add_u32 s{sH+2}, s{sH}, {80*131072}
    s_add_u32 s{sH+3}, s{sH}, {81*131072}
    s_add_u32 s46, s40, 32
    s_lshl_b32 s46, s46, 1
    s_lshr_b32 s47, s43, 1
    s_add_u32 s46, s46, s47
    s_lshl_b32 s{sH+4}, s46, 17
    s_and_b32 s46, s43, 1
    s_lshl_b32 s46, s46, 9
    v_lshrrev_b32 v{t0}, 5, v{vl}
    v_lshlrev_b32 v{t0}, 9, v{t0}
    v_add3_u32 v{vH2}, v{vH}, v{t0}, s46
    """)
    G = Gaps(st)
    frags = []
    for ks in range(18):
        for i in range(8): frags.append((0, ks, i))
    for ks in range(18):
        for i in range(2): frags.append((2, ks, i))
    for ks in range(18):
        for i in range(8): frags.append((1, ks, i))
    def rd(j):
        p, ks, i = frags[j]; w = WR + 4 * (j % NW)
        if p == 2:
            ad = vTR2; off = ks * 2048 + i * 1024; hs = 256
        else:
            slot = (ks + (18 if p else 0)) % RING
            ad = vTR + (i >> 1); off = slot * 8192 + (i & 1) * 1024; hs = 512
        return [lambda: st.lds(f"ds_read_b64_tr_b16 v[{w}:{w+1}], v{ad} offset:{off}", ("f", j)),
                lambda: st.lds(f"ds_read_b64_tr_b16 v[{w+2}:{w+3}], v{ad} offset:{off+hs}", ("f", j))]
    def accreg(p, i, t):
        if p == 2: return ACC2 + 16 * i + 4 * t
        return ACC + 16 * ((i >> 1) + 4 * (i & 1)) + 4 * t
    D = NW - 1
    first = {}
    for j, (p, ks, i) in enumerate(frags):
        w = WR + 4 * (j % NW)
        for t in range(4):
            c = accreg(p, i, t)
            src = "0" if ks == 0 else f"v[{c}:{c+3}]"
            m = G.mfma(f"v_mfma_f32_16x16x32_bf16 v[{c}:{c+3}], v[{w}:{w+3}], {xreg(ks,t)}, {src}")
            if t == 0:
                first.setdefault((p, ks), m)
                if p == 0 and i == 0:
                    G.add_pre(m, lambda j=j, ks=ks: st.wait(vm=("x", ks, 3 if ks else 0), lg=("f", j)))
                else:
                    G.add_pre(m, lambda j=j: st.wait(lg=("f", j)))
            elif p == 0 and i == 0 and ks == 0:
                G.add_pre(m, lambda t=t: st.wait(vm=("x", 0, t)))
    def bar(p, ks):
        def f():
            st.wait(vm=("w2", 8) if p == 2 else ("w", p, ks)); a("s_barrier")
        return f
    if early: st.wait(vm="all")
    bar(0, 0)()
    if STAMP[0]:
        stamp(a, 1); a("s_waitcnt lgkmcnt(0)")
    if early:
        for k in range(XD): run(xload(k))
    for j in range(D): run(rd(j))
    barpos = {}
    for j in range(len(frags) - D):
        p, ks, i = frags[j + D]
        if i == 0 and (p != 2 or ks == 0):
            G.add_pre(4 * j, bar(p, ks), cost=2)
            barpos[(p, ks)] = 4 * j
        r = rd(j + D)
        G.add_gap(4 * j, r[0]); G.add_gap(4 * j + 1, r[1])
    p2n = 0
    for ks in range(18):
        m0 = first[(0, ks)]
        if ks + XD < 18: G.place(m0 + 2, xload(ks + XD), step=xstep)
        nx = ks + RING - 1
        mb = barpos[(0, ks + 1)] if ks < 17 else barpos[(2, 0)]
        if nx < 18:
            G.place(mb + 2, dma_stage(0, nx), step=1)
        else:
            if late1: mb = max(mb, first[(0, 15)] + 24 * (nx - 18))
            G.place(mb + 2, dma_stage(1, nx - 18), step=1)
        if ks < 9 and not early:
            G.place(mb + 7, dma_p2(ks), step=1)
    for ks in range(18):
        nx = ks + RING - 1
        if nx < 18 :
            mb = barpos[(1, ks + 1)]
            G.place(mb + 2, dma_stage(1, nx), step=1)
    tcount = [0]
    def epi_main(p):
        fs = []
        for kk in range(2):
            for t in range(4):
                tmp = TMP + 4 * (tcount[0] % 4); tcount[0] += 1
                for hh in range(2):
                    g = ACC + 16 * (2 * kk + hh) + 4 * t; u = g + 64
                    for e in range(4): fs.append(f"v_mul_f32 v{g+e}, v{g+e}, v{u+e}")
                    fs.append(f"v_cvt_pk_bf16_f32 v{tmp+2*hh}, v{g}, v{g+1}")
                    fs.append(f"v_cvt_pk_bf16_f32 v{tmp+2*hh+1}, v{g+2}, v{g+3}")
                so = sH + 2 * p + kk
                fs.append(lambda tmp=tmp, so=so, t=t: st.vmem(f"buffer_store_dwordx4 v[{tmp}:{tmp+3}], v{vH}, s[{sHF}:{sHF+3}], s{so} offen offset:{t*1024}{sc}", ("h", p)))
        return fs
    def epi2():
        fs = []
        for tp in range(2):
            tmp = TMP + 4 * (tcount[0] % 4); tcount[0] += 1
            for hh in range(2):
                g = ACC2 + 4 * (2 * tp + hh); u = g + 16
                for e in range(4): fs.append(f"v_mul_f32 v{g+e}, v{g+e}, v{u+e}")
                fs.append(f"v_cvt_pk_bf16_f32 v{tmp+2*hh}, v{g}, v{g+1}")
                fs.append(f"v_cvt_pk_bf16_f32 v{tmp+2*hh+1}, v{g+2}, v{g+3}")
            fs.append("s_nop 1")
            fs.append(f"v_permlane32_swap_b32 v{tmp}, v{tmp+2}")
            fs.append(f"v_permlane32_swap_b32 v{tmp+1}, v{tmp+3}")
            fs.append("s_nop 0")
            fs.append(lambda tmp=tmp, tp=tp: st.vmem(f"buffer_store_dwordx4 v[{tmp}:{tmp+3}], v{vH2}, s[{sHF}:{sHF+3}], s{sH+4} offen offset:{tp*2048}{sc}", ("h", 2)))
        return fs
    last = G.place(first[(2, 0)] + 8, epi_main(0))
    assert last < first[(1, 0)] - 4, (last, first[(1, 0)])
    G.place(first[(1, 0)] + 8, epi2())
    if STAMP[0]:
        def mk(i):
            def f():
                st.wait(lg="all"); stamp(a, i); a("s_waitcnt lgkmcnt(0)")
            return f
        G.add_pre(first[(0, 1)], mk(2)); G.add_pre(first[(2, 0)], mk(3)); G.add_pre(first[(1, 0)], mk(4))
    G.emit()
    stamp(a, 5)
    a("s_nop 7")
    run(epi_main(1))
    st.wait(vm="all")
    stamp(a, 6)
    stamp_flush(a, 1, 7, sw)
    a("L_g1_end:")
    a.end(n, 256, 256, P2B + 36 * 1024, vgpr=512, accum=256)

def k_g2(a, R=8, sc="", use_y=True, noh=False, now=False, mapm=0, hsame=False, wsc=""):
    n = "g2_kernel"; a.begin(n); st = St(a); stamp(a, 0)
    sWd, sHF, sX, sO, sYT = 4, 8, 12, 16, 24
    sw = 20; sWo = 30; sHo = 31; sM = 32
    ACC = 0; WR = 80; NW = 4
    vD = 100
    vTR = 106; vHA = 108; vHB = 109; vl = 110; vXO = 111; vY = 112; vYR = 113; vPW = 114; vPR = 115
    t0, t1, t2, t3 = 116, 117, 118, 119
    XR = 120
    YB = R * 4 * 4096
    a(f"""
    s_and_b32 s40, s2, 7
    s_lshr_b32 s41, s2, 3
    s_cmp_ge_u32 s41, 30
    s_cbranch_scc1 L_g2_end
    s_mul_i32 s40, s40, 30
    s_add_u32 s40, s40, s41
    s_cmp_ge_u32 s40, 234
    s_cbranch_scc1 L_g2_end
    s_load_dwordx2 s[4:5], s[0:1], {OFF['wd']}
    s_load_dwordx2 s[12:13], s[0:1], {OFF['x']}
    s_load_dwordx2 s[16:17], s[0:1], {OFF['out']}
    s_load_dwordx2 s[22:23], s[0:1], {OFF['ws']}
    v_lshrrev_b32 v{t0}, 6, v0
    v_and_b32 v{vl}, 63, v0
    s_mul_i32 s42, s40, 7282
    v_readfirstlane_b32 s{sw}, v{t0}
    s_lshr_b32 s42, s42, 16
    s_mul_i32 s43, s42, 9
    s_sub_u32 s43, s40, s43
    """)
    if mapm == 1:
        a("s_mul_i32 s43, s40, 2521"); a("s_lshr_b32 s43, s43, 16"); a("s_mul_i32 s42, s43, 26"); a("s_sub_u32 s42, s40, s42")
    if mapm == 2:
        a("s_mul_i32 s44, s40, 841"); a("s_lshr_b32 s44, s44, 16"); a("s_mul_i32 s45, s44, 78"); a("s_sub_u32 s45, s40, s45")
        a("s_mul_i32 s42, s45, 21846"); a("s_lshr_b32 s42, s42, 16"); a("s_mul_i32 s46, s42, 3"); a("s_sub_u32 s45, s45, s46")
        a("s_mul_i32 s44, s44, 3"); a("s_add_u32 s43, s44, s45")
    a(f"""
    v_lshrrev_b32 v{t0}, 3, v{vl}
    v_bfe_u32 v{t1}, v{vl}, 4, 1
    v_lshlrev_b32 v{t1}, 2, v{t1}
    v_and_b32 v{t2}, 7, v{vl}
    v_xor_b32 v{t1}, v{t1}, v{t2}
    v_mul_u32_u24 v{t0}, 1152, v{t0}
    v_lshl_add_u32 v{t0}, v{t1}, 4, v{t0}
    s_mul_i32 s44, s{sw}, 36864
    s_lshl_b32 s45, s43, 7
    s_add_u32 s44, s44, s45
    v_add_u32 v{vD}, s44, v{t0}
    v_add_u32 v{vD+1}, {9216-1024}, v{vD}
    v_add_u32 v{vD+2}, {2*9216-2048}, v{vD}
    v_add_u32 v{vD+3}, {3*9216-3072}, v{vD}
    v_add_u32 v{vD+4}, {2*9216-1024}, v{vD}
    v_add_u32 v{vD+5}, {9216-2048}, v{vD}
    s_mul_i32 s{sM}, s{sw}, {R*4096}
    s_mul_i32 s44, s42, 5120
    s_lshl_b32 s45, s{sw}, 17
    s_add_u32 s44, s44, s45
    v_lshlrev_b32 v{t0}, 4, v{vl}
    v_add_u32 v{vHA}, s44, v{t0}
    s_cmp_eq_u32 s42, 25
    s_cselect_b32 s44, 0x40000000, 3072
    v_add_u32 v{vHB}, s44, v{vHA}
    s_mov_b32 s{sWo}, 0
    s_mov_b32 s{sHo}, 0
    s_waitcnt lgkmcnt(0)
    """)
    srd(a, sWd, 4, 0 if now else W_SZ); srd(a, sX, 12, X_SZ); srd(a, sO, 16, X_SZ)
    ws_srd(a, sHF, 22, HF_OFF, 0 if noh else HF_SZ); ws_srd(a, sYT, 22, YT_OFF, YT_SZ)
    def run(fs):
        for f in fs:
            if isinstance(f, str): a(f)
            else: f()
    def hreg(nn, t):
        b = 20 * (nn % R) + 4 * t
        return f"a[{b}:{b+3}]"
    def loads(nn):
        fs = [f"s_add_u32 m0, s{sM}, {(nn % R)*4096}"]
        if nn: fs.append(f"s_add_u32 s{sWo}, s{sWo}, {0 if hsame else 147456}")
        else: fs.append("s_nop 0")
        for b in range(4):
            v = vD + b
            if 16 <= nn < 20 and b in (1, 2): v = vD + 3 + b
            fs.append(lambda v=v, b=b: st.vmem(f"buffer_load_dwordx4 v{v}, s[{sWd}:{sWd+3}], s{sWo} offen offset:{b*1024}{wsc} lds", ("w", nn)))
        if nn: fs.append(f"s_add_u32 s{sHo}, s{sHo}, {0 if hsame else 524288}")
        for t in range(5):
            v = vHA if t < 3 else vHB; off = t * 1024 if t < 3 else (t - 3) * 1024
            fs.append(lambda v=v, off=off, t=t: st.vmem(f"buffer_load_dwordx4 {hreg(nn,t)}, v{v}, s[{sHF}:{sHF+3}], s{sHo} offen offset:{off}{sc}", ("h", nn)))
        return fs
    for nn in range(R - 1): run(loads(nn))
    a(f"""
    v_lshrrev_b32 v{t0}, 2, v{vl}
    v_lshlrev_b32 v{t0}, 7, v{t0}
    v_and_b32 v{t1}, 3, v{vl}
    v_lshl_add_u32 v{t0}, v{t1}, 4, v{t0}
    v_add_u32 v{t0}, s{sM}, v{t0}
    v_bfe_u32 v{t2}, v{vl}, 3, 1
    v_lshl_add_u32 v{vTR}, v{t2}, 6, v{t0}
    v_xor_b32 v{t2}, 1, v{t2}
    v_lshl_add_u32 v{vTR+1}, v{t2}, 6, v{t0}
    """)
    a(f"""
    s_mul_i32 s44, s42, 80
    s_lshr_b32 s45, s{sw}, 1
    s_lshl_b32 s46, s45, 4
    s_add_u32 s44, s44, s46
    s_mul_i32 s44, s44, 1152
    s_lshl_b32 s46, s43, 7
    s_add_u32 s44, s44, s46
    s_and_b32 s47, s{sw}, 1
    s_lshl_b32 s46, s47, 6
    s_add_u32 s44, s44, s46
    v_and_b32 v{t0}, 15, v{vl}
    v_mul_u32_u24 v{t0}, 1152, v{t0}
    v_lshrrev_b32 v{t1}, 4, v{vl}
    v_lshl_add_u32 v{t0}, v{t1}, 4, v{t0}
    v_add_u32 v{vXO}, s44, v{t0}
    s_mov_b32 s33, {32*1152}
    s_mov_b32 s34, {64*1152}
    v_bfe_u32 v{t2}, v{vl}, 2, 2
    v_lshl_add_u32 v{t2}, v{t1}, 3, v{t2}
    v_mul_u32_u24 v{t2}, 160, v{t2}
    v_and_b32 v{t3}, 3, v{vl}
    v_lshl_add_u32 v{t2}, v{t3}, 3, v{t2}
    s_mul_i32 s46, s47, {32*160}
    s_lshl_b32 s48, s45, 5
    s_add_u32 s46, s46, s48
    s_add_u32 s46, s46, {YB}
    v_add_u32 v{vYR}, s46, v{t2}
    s_mul_i32 s46, s{sw}, 20480
    v_lshlrev_b32 v{t0}, 4, v{vl}
    v_add_u32 v{vPW}, s46, v{t0}
    s_lshl_b32 s46, s45, 12
    s_lshl_b32 s48, s47, 11
    s_add_u32 s46, s46, s48
    v_add_u32 v{vPR}, s46, v{t0}
    s_lshl_b32 s35, s{sw}, 10
    s_lshl_b32 s36, s43, 18
    s_mul_i32 s46, s42, 160
    s_add_u32 s36, s36, s46
    """)
    def yloads():
        fs = []
        for it in range(3):
            fs.append(f"v_add_u32 v{t0}, {it*256}, v0")
            fs.append(f"v_mul_u32_u24 v{t1}, 6554, v{t0}")
            fs.append(f"v_lshrrev_b32 v{t1}, 16, v{t1}")
            fs.append(f"v_mul_u32_u24 v{t2}, {4096-160}, v{t1}")
            fs.append(f"v_lshl_add_u32 v{t2}, v{t0}, 4, v{t2}")
            if it == 2:
                fs.append(f"v_cmp_gt_u32 vcc, 640, v{t0}")
                fs.append(f"v_mov_b32 v{t3}, 0x40000000")
                fs.append("s_nop 0")
                fs.append(f"v_cndmask_b32 v{t2}, v{t3}, v{t2}, vcc")
            fs.append(f"s_add_u32 m0, s35, {YB + it*4096}")
            fs.append("s_nop 0")
            fs.append(lambda: st.vmem(f"buffer_load_dwordx4 v{t2}, s[{sYT}:{sYT+3}], s36 offen{sc} lds", "y"))
        return fs
    a(f"v_mov_b32 v{vY}, v0")
    G = Gaps(st)
    def rd(j):
        nn, ct = j >> 2, j & 3; w = WR + 4 * (j % NW)
        off = (nn % R) * 4096 + (ct & 1) * 8
        return [lambda: st.lds(f"ds_read_b64_tr_b16 v[{w}:{w+1}], v{vTR+(ct>>1)} offset:{off}", ("f", j)),
                lambda: st.lds(f"ds_read_b64_tr_b16 v[{w+2}:{w+3}], v{vTR+(ct>>1)} offset:{off+2048}", ("f", j))]
    D = 2
    for j in range(144):
        nn, ct = j >> 2, j & 3; w = WR + 4 * (j % NW)
        for t in range(5):
            c = ACC + 16 * t + 4 * ct
            src = "0" if nn == 0 else f"v[{c}:{c+3}]"
            m = G.mfma(f"v_mfma_f32_16x16x32_bf16 v[{c}:{c+3}], v[{w}:{w+3}], {hreg(nn,t)}, {src}")
            if t == 0:
                G.add_pre(m, lambda j=j, nn=nn, ct=ct: st.wait(vm=("h", nn) if ct == 0 else None, lg=("f", j)))
    st.wait(vm=("w", 0))
    if STAMP[0]:
        stamp(a, 1); a("s_waitcnt lgkmcnt(0)")
        def mk(i):
            def f():
                st.wait(lg="all"); stamp(a, i); a("s_waitcnt lgkmcnt(0)")
            return f
        G.add_pre(20*12, mk(2)); G.add_pre(20*24, mk(3))
    for j in range(D): run(rd(j))
    for j in range(144 - D):
        nn, ct = (j + D) >> 2, (j + D) & 3
        r = rd(j + D)
        if ct == 0: G.add_gap(5 * j, lambda nn=nn: st.wait(vm=("w", nn)))
        G.add_gap(5 * j, r[0]); G.add_gap(5 * j + 1, r[1])
    for nn in range(36):
        if nn + R - 1 < 36: G.place(20 * nn + 1, loads(nn + R - 1), step=1)
    fs = [f.replace(", v0", f", v{vY}") if isinstance(f, str) else f for f in yloads()] if use_y else []
    for it in range(3):
        so = "0" if it == 0 else f"s{32+it}"
        fs.append(lambda it=it, so=so: st.vmem(f"buffer_load_dwordx4 v[{XR+4*it}:{XR+4*it+3}], v{vXO}, s[{sX}:{sX+3}], {so} offen", ("xr", it)))
    G.place(20 * (36 - R + 1) + 1, fs, step=0)
    G.emit()
    stamp(a, 4)
    if STAMP[0]: a("s_waitcnt lgkmcnt(0)")
    st.wait(vm="all")
    a("s_nop 4")
    a("s_barrier")
    for t in range(5):
        for ct in range(4):
            c = ACC + 16 * t + 4 * ct
            st.lds(f"ds_write_b128 v{vPW}, v[{c}:{c+3}] offset:{t*4096+ct*1024}", "pw")
    st.wait(lg="all")
    a("s_barrier")
    a("s_mov_b32 s44, 0xffff0000")
    for it in range(3):
        if it == 2:
            a(f"s_cmp_ge_u32 s{sw}, 2"); a("s_cbranch_scc1 L_g2_fin")
        B = 0
        for wv in range(4):
            for c in range(2):
                off = wv * 20480 + it * 8192 + c * 1024
                if off < 65536:
                    st.lds(f"ds_read_b128 v[{B+8*wv+4*c}:{B+8*wv+4*c+3}], v{vPR} offset:{off}", ("pr", it))
                else:
                    a(f"v_add_u32 v{t0}, 32768, v{vPR}")
                    st.lds(f"ds_read_b128 v[{B+8*wv+4*c}:{B+8*wv+4*c+3}], v{t0} offset:{off-32768}", ("pr", it))
        if use_y:
            st.lds(f"ds_read_b64_tr_b16 v[32:33], v{vYR} offset:{it*64}", ("pr", it))
            st.lds(f"ds_read_b64_tr_b16 v[34:35], v{vYR} offset:{it*64+640}", ("pr", it))
        for i in range(4):
            a(f"v_lshlrev_b32 v{40+2*i}, 16, v{XR+4*it+i}")
            a(f"v_and_b32 v{41+2*i}, s44, v{XR+4*it+i}")
        st.wait(lg=("pr", it))
        if use_y:
            for i in range(4):
                a(f"v_lshlrev_b32 v{48+2*i}, 16, v{32+i}")
                a(f"v_and_b32 v{49+2*i}, s44, v{32+i}")
            for i in range(4):
                a(f"v_pk_add_f32 v[{40+2*i}:{41+2*i}], v[{40+2*i}:{41+2*i}], v[{48+2*i}:{49+2*i}]")
        for i in range(4):
            a(f"v_pk_add_f32 v[{2*i}:{2*i+1}], v[{2*i}:{2*i+1}], v[{8+2*i}:{9+2*i}]")
            a(f"v_pk_add_f32 v[{16+2*i}:{17+2*i}], v[{16+2*i}:{17+2*i}], v[{24+2*i}:{25+2*i}]")
        for i in range(4):
            a(f"v_pk_add_f32 v[{2*i}:{2*i+1}], v[{2*i}:{2*i+1}], v[{40+2*i}:{41+2*i}]")
        for i in range(4):
            a(f"v_pk_add_f32 v[{2*i}:{2*i+1}], v[{2*i}:{2*i+1}], v[{16+2*i}:{17+2*i}]")
        o = 56 + 4 * it
        for i in range(4):
            a(f"v_cvt_pk_bf16_f32 v{o+i}, v{2*i}, v{2*i+1}")
        so = "0" if it == 0 else f"s{32+it}"
        a(f"buffer_store_dwordx4 v[{o}:{o+3}], v{vXO}, s[{sO}:{sO+3}], {so} offen")
    a("L_g2_fin:")
    stamp(a, 5)
    a("s_waitcnt vmcnt(0)")
    stamp(a, 6)
    stamp_flush(a, 3, 7, sw)
    a("L_g2_end:")
    a.end(n, 240, 256, YB + 3 * 4096, vgpr=512, accum=256)

def header():
    src = open(f"cdna_kernels/{NAME}.s.ref").read().split("\n") if "hdr" in sys.argv else []
    return "\n".join(l for l in src if l.startswith(";") and "@launch" not in l)

if __name__ == "__main__":
    a = Asm()
    k_ln(a); k_g1(a); k_g2(a, use_y=False)
    open(sys.argv[1], "w").write(a.text())
```

```python
from gen import *
import math
KR_STR = 4608; KR_SZ = 576 * KR_STR
KG_LDS = 16 * 544

def kgen_wave(st, sCh, sP, sKR, lane, sLds, R=8, sc=" sc1", sT=44, sKL=None, after_ld=None):
    a = st
    nxt = [R]
    def al(n, align=2):
        while nxt[0] % align: nxt[0] += 1
        r = nxt[0]; nxt[0] += n; return r
    BF = al(32, 4); AF = al(32, 4); DD = al(16, 4); PK = al(8, 4)
    Z = al(36); W1 = al(4); W8 = al(4); W8c = al(4); WW = al(4); BB = al(4); T = al(8)
    raw = al(6); vW = al(1); vRd = al(1); vo1 = al(1); vo2 = al(1); dsk = al(1); t0 = al(1); t1 = al(1); t2 = al(1)
    a(f"v_lshlrev_b32 v{t0}, 2, v{lane}")
    a(f"s_lshl_b32 s{sT}, s{sCh}, 8")
    a(f"s_lshl_b32 s{sT+1}, s{sCh}, 1")
    a(f"v_mov_b32 v{t1}, 0")
    st.vmem(f"buffer_load_ushort v{raw+4}, v{t1}, s[{sP+16}:{sP+19}], s{sT+1} offen", "kg0")
    for i in range(4):
        st.vmem(f"buffer_load_dword v{raw+i}, v{t0}, s[{sP+4*i}:{sP+4*i+3}], s{sT} offen", ("kg", i))
    st.vmem(f"buffer_load_ushort v{raw+5}, v{t1}, s[{sP+20}:{sP+23}], s{sT+1} offen", "kg5")
    if after_ld: after_ld()
    def kst(n, src, vo, off):
        if sKL is None:
            st.vmem(f"buffer_store_dwordx{n} v[{src}:{src+n-1}], v{vo}, s[{sKR}:{sKR+3}], s{sT} offen offset:{off}{sc}", "kst")
        else:
            st.lds(f"ds_write_b{32*n} v{vo}, v[{src}:{src+n-1}] offset:{off}", "kst")
    a(f"v_lshl_add_u32 v{vW}, v{lane}, 3, s{sLds}")
    a(f"v_and_b32 v{t0}, 15, v{lane}")
    a(f"v_lshrrev_b32 v{t1}, 4, v{lane}")
    a(f"v_mul_u32_u24 v{vRd}, 544, v{t0}")
    a(f"v_lshl_add_u32 v{vRd}, v{t1}, 4, v{vRd}")
    a(f"v_add_u32 v{vRd}, s{sLds}, v{vRd}")
    a(f"v_lshlrev_b32 v{t0}, 4, v{t0}")
    a(f"v_lshl_add_u32 v{vo2}, v{t1}, 8, v{t0}")
    a(f"v_sub_u32 v{vo2}, {2*(2040-128*12)}, v{vo2}")
    a(f"v_lshrrev_b32 v{t2}, 1, v{t1}")
    a(f"v_lshl_add_u32 v{t0}, v{t2}, 8, v{t0}")
    a(f"v_and_b32 v{t2}, 1, v{t1}")
    a(f"v_lshl_add_u32 v{t0}, v{t2}, 3, v{t0}")
    a(f"v_sub_u32 v{vo1}, {2*(2044-256)}, v{t0}")
    if sKL is None: a(f"s_mul_i32 s{sT}, s{sCh}, {KR_STR}")
    else:
        a(f"v_add_u32 v{vo1}, s{sKL}, v{vo1}"); a(f"v_add_u32 v{vo2}, s{sKL}, v{vo2}")
    a(f"s_mov_b32 s{sT+1}, 0xffff0000")
    a(f"s_mov_b32 s{sT+2}, {f32hex(math.log2(math.e))}")
    L2E = f"s{sT+2}"
    a(f"v_mov_b32 v{PK}, 0"); a(f"v_mov_b32 v{PK+1}, 0")
    a(f"v_lshlrev_b32 v{t0}, 3, v{lane}")
    a(f"v_add_u32 v{t0}, 4096, v{t0}")
    if sKL is not None: a(f"v_add_u32 v{t0}, s{sKL}, v{t0}")
    kst(2, PK, t0, 0)
    def expbf(dst, src):
        a(f"v_mul_f32 v{t1}, {L2E}, v{src}")
        a(f"v_fma_f32 v{t2}, v{src}, {L2E}, -v{t1}")
        a(f"v_exp_f32 v{t1}, v{t1}")
        lo = math.log2(math.e) - float(__import__('numpy').float32(math.log2(math.e)))
        a(f"v_fmamk_f32 v{t2}, v{src}, {f32hex(lo)}, v{t2}")
        a(f"v_mul_f32 v{t2}, {f32hex(math.log(2))}, v{t2}")
        a(f"v_fma_f32 v{t1}, v{t1}, v{t2}, v{t1}")
        a(f"v_cvt_pk_bf16_f32 v{dst}, v{t1}, v{t1}")
        a(f"v_lshlrev_b32 v{dst}, 16, v{dst}")
    dt = raw + 4
    st.wait(vm="kg0")
    a(f"v_lshlrev_b32 v{dt}, 16, v{dt}")
    expbf(dt, dt)
    st.wait(vm=("kg", 1))
    ar = [T, T + 1]; ai = [T + 2, T + 3]
    a(f"v_lshlrev_b32 v{ar[0]}, 16, v{raw}"); a(f"v_and_b32 v{ar[1]}, s{sT+1}, v{raw}")
    a(f"v_lshlrev_b32 v{ai[0]}, 16, v{raw+1}"); a(f"v_and_b32 v{ai[1]}, s{sT+1}, v{raw+1}")
    for m in range(2):
        expbf(ar[m], ar[m])
        a(f"v_mul_f32 v{ar[m]}, v{ar[m]}, v{dt}")
        a(f"v_mul_f32 v{ai[m]}, v{ai[m]}, v{dt}")
    for (p, w) in ((8, W8), (1, W1), (128, WW)):
        for m in range(2):
            x0, x1 = T + 4 + 2 * m, T + 5 + 2 * m
            a(f"v_mul_f32 v{x0}, {f32hex(-p*math.log2(math.e))}, v{ar[m]}")
            a(f"v_mul_f32 v{x1}, {f32hex(p/(2*math.pi))}, v{ai[m]}")
            a(f"v_exp_f32 v{x0}, v{x0}")
            a(f"v_fract_f32 v{x1}, v{x1}")
            a(f"v_cos_f32 v{w+2*m}, v{x1}")
            a(f"v_sin_f32 v{w+2*m+1}, v{x1}")
            a("s_nop 0")
            a(f"v_pk_mul_f32 v[{w+2*m}:{w+2*m+1}], v[{w+2*m}:{w+2*m+1}], v[{x0}:{x0+1}] op_sel_hi:[1,0]")
    for m in range(2):
        a(f"v_mov_b32 v{W8c+2*m}, v{W8+2*m}")
        a(f"v_sub_f32 v{W8c+2*m+1}, 0, v{W8+2*m+1}")
    st.wait(vm="kg5")
    a(f"v_add_f32 v{dt}, v{dt}, v{dt}")
    z = lambda r: Z + 4 * r
    a(f"v_lshlrev_b32 v{z(0)}, 16, v{raw+2}"); a(f"v_and_b32 v{z(0)+2}, s{sT+1}, v{raw+2}")
    a(f"v_lshlrev_b32 v{z(0)+1}, 16, v{raw+3}"); a(f"v_and_b32 v{z(0)+3}, s{sT+1}, v{raw+3}")
    for i in range(4): a(f"v_mul_f32 v{z(0)+i}, v{z(0)+i}, v{dt}")
    a(f"v_lshlrev_b32 v{dsk}, 16, v{raw+5}")
    a(f"v_cmp_eq_u32 vcc, 0, v{lane}")
    a(f"v_and_b32 v{t0}, 1, v{lane}")
    a("s_nop 0")
    a(f"v_cndmask_b32 v{dsk}, 0, v{dsk}, vcc")
    a(f"v_cmp_eq_u32 vcc, 0, v{t0}")
    def cmul(d, s, w):
        for m in range(2):
            a(f"v_pk_mul_f32 v[{T+2*m}:{T+2*m+1}], v[{s+2*m}:{s+2*m+1}], v[{w+2*m}:{w+2*m+1}] op_sel_hi:[0,1]")
        for m in range(2):
            a(f"v_pk_fma_f32 v[{d+2*m}:{d+2*m+1}], v[{s+2*m}:{s+2*m+1}], v[{w+2*m}:{w+2*m+1}], v[{T+2*m}:{T+2*m+1}] op_sel:[1,1,0] op_sel_hi:[1,0,1] neg_lo:[0,1,0]")
    pk = [0]
    def put(s, rows):
        p = PK + 2 * (pk[0] % 4); pk[0] += 1
        a(f"v_cvt_pk_bf16_f32 v{p}, v{s}, v{s+1}")
        a(f"v_cvt_pk_bf16_f32 v{p+1}, v{s+2}, v{s+3}")
        for r in rows: st.lds(f"ds_write_b64 v{vW}, v[{p}:{p+1}] offset:{r*544}", "kw")
    def getf(dst, tag):
        for s in range(8): st.lds(f"ds_read_b128 v[{dst+4*s}:{dst+4*s+3}], v{vRd} offset:{s*64}", tag)
    def mm(t):
        st.wait(lg=("A", t))
        for s in range(8):
            c = DD + 4 * t
            a(f"v_mfma_f32_16x16x32_bf16 v[{c}:{c+3}], v[{AF+4*s}:{AF+4*s+3}], v[{BF+4*s}:{BF+4*s+3}], " + ("0" if s == 0 else f"v[{c}:{c+3}]"))
    a(f"v_mov_b32 v{PK+6}, 0x00003f80"); a(f"v_mov_b32 v{PK+7}, 0x00003f80")
    st.lds(f"ds_write_b64 v{vW}, v[{PK+6}:{PK+7}]", "kw")
    put(W8c, [1])
    for b in range(2, 16):
        cmul(BB, W8c if b == 2 else BB, W8c); put(BB, [b])
    getf(BF, "B")
    put(z(0), [0])
    for r in range(1, 8):
        cmul(z(r), z(r - 1), W1); put(z(r), [r])
    cmul(z(8), z(0), W8)
    for r in range(9):
        cmul(z(r), z(r), WW)
        if r < 8: put(z(r), [8 + r])
    getf(AF, ("A", 0))
    for aa in range(2):
        for r in (0, 2, 4, 6, 8):
            cmul(z(r), z(r), WW)
            rows = {0: [0], 2: [1], 4: [2, 4], 6: [5], 8: [6]}[r]
            put(z(r), [8 * aa + x for x in rows])
    mm(0)
    getf(AF, ("A", 1))
    for aa in range(4):
        for i, r in enumerate((0, 4, 8)):
            cmul(z(r), z(r), WW); put(z(r), [4 * aa + i])
    mm(1)
    getf(AF, ("A", 2))
    for aa in range(8):
        for i, r in enumerate((0, 8)):
            cmul(z(r), z(r), WW); put(z(r), [4 * (aa & 3) + 2 * (aa >> 2) + i])
    mm(2)
    getf(AF, ("A", 3))
    O = Z
    while O % 4: O += 1
    d = DD
    a(f"v_add_f32 v{d}, v{d}, v{dsk}")
    a(f"v_cvt_pk_bf16_f32 v{O}, v{d+3}, v{d+2}"); a(f"v_cvt_pk_bf16_f32 v{O+1}, v{d+1}, v{d}")
    kst(2, O, vo1, 512)
    d = DD + 4
    a(f"v_cvt_pk_bf16_f32 v{O+2}, v{d+2}, v{d+1}"); a(f"v_cvt_pk_bf16_f32 v{O+3}, v{d}, v{d}")
    kst(2, O + 2, vo1, 0)
    mm(3)
    d = DD + 8; o = O + 4
    a(f"v_cvt_pk_bf16_f32 v{o}, v{d+2}, v{d+2}"); a(f"v_cvt_pk_bf16_f32 v{o+1}, v{d+1}, v{d+1}")
    a(f"v_cvt_pk_bf16_f32 v{o+2}, v{d+1}, v{d}"); a(f"v_cvt_pk_bf16_f32 v{o+3}, v{d}, v{d}")
    kst(4, o, vo2, 2048)
    a("s_nop 3")
    for hh in range(2):
        d = DD + 12 + 2 * hh; o = O + 8 + 4 * hh
        a(f"v_cndmask_b32 v{t0}, v{d+1}, v{d}, vcc")
        a(f"v_cvt_pk_bf16_f32 v{o}, v{d+1}, v{d+1}"); a(f"v_cvt_pk_bf16_f32 v{o+1}, v{d+1}, v{t0}")
        a(f"v_cvt_pk_bf16_f32 v{o+2}, v{d}, v{d}"); a(f"v_cvt_pk_bf16_f32 v{o+3}, v{d}, v{d}")
        kst(4, o, vo2, 1024 * (1 - hh))
    return nxt[0]

def k_pre(a):
    n = "pre_kernel"; a.begin(n); stamp(a, 0)
    a(f"""
    s_cmp_ge_u32 s2, 256
    s_cbranch_scc1 L_pre_end
    s_load_dwordx2 s[16:17], s[0:1], {OFF['ws']}
    v_lshrrev_b32 v1, 6, v0
    v_and_b32 v0, 63, v0
    s_nop 0
    v_readfirstlane_b32 s20, v1
    s_cmp_lg_u32 s20, 0
    s_cbranch_scc1 L_pre_kg
    s_load_dwordx2 s[4:5], s[0:1], {OFF['x']}
    s_waitcnt lgkmcnt(0)
    """)
    st = St(a)
    srd(a, 4, 4, X_SZ)
    ws_srd(a, 8, 16, XF_OFF, XF_SZ); ws_srd(a, 12, 16, XT_OFF, XT_SZ)
    ln_wave(st, 2, 4, 8, 12, 0, 0, sc="")
    stamp(a, 1)
    a("s_waitcnt vmcnt(0)")
    stamp(a, 2); stamp_flush(a, 0, 3, 20)
    a("s_endpgm")
    a("L_pre_kg:")
    a(f"""
    s_sub_u32 s21, s20, 1
    s_lshl_b32 s22, s21, 8
    s_add_u32 s22, s22, s2
    s_cmp_ge_u32 s22, 576
    s_cbranch_scc1 L_pre_end
    """)
    for i, k in enumerate(("lar", "aim", "cre", "cim", "ldt", "dsk")):
        a(f"s_load_dwordx2 s[{60+4*i}:{61+4*i}], s[0:1], {OFF[k]}")
    a(f"s_mul_i32 s23, s21, {KG_LDS}")
    a(f"s_add_u32 s23, s23, {8*1344}")
    a("s_waitcnt lgkmcnt(0)")
    for i in range(6): srd(a, 60 + 4 * i, 60 + 4 * i, 576 * 256 if i < 4 else 1152)
    ws_srd(a, 8, 16, KR_OFF, KR_SZ)
    st = St(a)
    top = kgen_wave(st, 22, 60, 8, 0, 23, sc="")
    stamp(a, 1)
    a("s_waitcnt vmcnt(0)")
    stamp(a, 2); stamp_flush(a, 0, 3, 20)
    a("L_pre_end:")
    a.end(n, 256, 256, 8 * 1344 + 3 * KG_LDS, vgpr=192, accum=192)
    assert top <= 192, top

CV_XS = 4160; CV_KR = 4 * CV_XS; CV_LDS = CV_KR + 5120
def conv_loads(st, sCh, sXT, sKR, lane, sLds, R, sc, sT):
    a = st
    t0, t1, hd = R, R + 1, R + 4
    a(f"s_mul_i32 s{sT}, s{sCh}, {XT_STR}")
    a(f"s_mul_i32 s{sT+1}, s{sCh}, {KR_STR}")
    a(f"v_lshlrev_b32 v{t0}, 4, v{lane}")
    a(f"v_and_b32 v{t1}, 6, v{lane}")
    a(f"v_and_b32 v{R+2}, 1, v{lane}")
    a(f"v_lshl_add_u32 v{t1}, v{R+2}, 4, v{t1}")
    st.vmem(f"buffer_load_dwordx4 v[{hd}:{hd+3}], v{t1}, s[{sXT}:{sXT+3}], s{sT} offen offset:96{sc}", "cvh")
    a(f"s_add_u32 s{sT}, s{sT}, 128")
    for i in range(4):
        for c in range(4):
            a(f"s_add_u32 m0, s{sLds}, {c*CV_XS+32}")
            a(f"s_add_u32 s{sT+2}, s{sT}, {2*c}")
            st.vmem(f"buffer_load_dwordx4 v{t0}, s[{sXT}:{sXT+3}], s{sT+2} offen offset:{i*1024}{sc} lds", "cvx")
    a(f"s_add_u32 m0, s{sLds}, {CV_KR}")
    a("s_nop 0")
    for i in range(4):
        st.vmem(f"buffer_load_dwordx4 v{t0}, s[{sKR}:{sKR+3}], s{sT+1} offen offset:{i*1024}{sc} lds", "cvk")
    a(f"s_add_u32 m0, s{sLds}, {CV_KR+4096}")
    a(f"s_add_u32 s{sT+1}, s{sT+1}, 4096")
    st.vmem(f"buffer_load_dwordx4 v{t0}, s[{sKR}:{sKR+3}], s{sT+1} offen{sc} lds", "cvk")

def conv_compute(st, sCh, sYT, lane, sLds, R, sc, sT):
    a = st
    t0, t1, t2, hd = R, R + 1, R + 2, R + 4
    vA, vB, vY = R + 8, R + 9, R + 10
    ACC = R + 12; AF = ACC + 32; BF = AF + 64
    a(f"v_bfe_u32 v{t0}, v{lane}, 1, 2")
    a(f"v_mul_u32_u24 v{t0}, {CV_XS}, v{t0}")
    a(f"v_and_b32 v{t1}, 1, v{lane}")
    a(f"v_lshl_add_u32 v{t0}, v{t1}, 4, v{t0}")
    a(f"v_add_u32 v{t0}, s{sLds}, v{t0}")
    a(f"v_and_b32 v{t1}, 15, v{lane}")
    a(f"v_lshrrev_b32 v{t2}, 4, v{lane}")
    a(f"v_lshlrev_b32 v{vY}, 5, v{t1}")
    a(f"v_lshlrev_b32 v{vB}, 4, v{t2}")
    a(f"v_sub_u32 v{vB}, v{vB}, v{vY}")
    a(f"v_lshl_add_u32 v{vY}, v{t2}, 3, v{vY}")
    a(f"s_add_u32 s{sT}, s{sLds}, {CV_KR+480}")
    a(f"v_add_u32 v{vB}, s{sT}, v{vB}")
    a(f"v_add_u32 v{t1}, 1, v{t1}")
    a(f"v_and_b32 v{vA}, 3, v{t1}")
    a(f"v_mul_u32_u24 v{vA}, {CV_XS}, v{vA}")
    a(f"v_lshrrev_b32 v{t1}, 2, v{t1}")
    a(f"v_lshl_add_u32 v{vA}, v{t1}, 3, v{vA}")
    a(f"v_lshl_add_u32 v{vA}, v{t2}, 4, v{vA}")
    a(f"v_add_u32 v{vA}, s{sLds}, v{vA}")
    a(f"s_lshl_b32 s{sT}, s{sCh}, 12")
    st.wait(vm="cvh")
    st.lds(f"ds_write_b128 v{t0}, v[{hd}:{hd+3}]", "cvw")
    st.wait(vm="cvk")
    def rdA(rho, S):
        r = AF + 32 * (rho & 1) + 4 * S; off = 64 * (8 * S + rho)
        return [lambda: st.lds(f"ds_read_b64 v[{r}:{r+1}], v{vA} offset:{off}", ("A", rho, S)),
                lambda: st.lds(f"ds_read_b64 v[{r+2}:{r+3}], v{vA} offset:{off+8}", ("A", rho, S))]
    def rdB(rho, u):
        r = BF + 32 * (rho & 1) + 4 * u; off = 64 * (rho - 8 * u + 56)
        return [lambda: st.lds(f"ds_read_b128 v[{r}:{r+3}], v{vB} offset:{off}", ("B", rho, u))]
    pairs = sorted([(S, u) for S in range(8) for u in range(8 - S)], key=lambda p: (max(p), p))
    def reads(rho):
        fs = []
        for i in range(8): fs += rdA(rho, i) + rdB(rho, i)
        return fs
    G = Gaps(st)
    seen = set()
    for rho in range(8):
        for (S, u) in pairs:
            T = S + u; c = ACC + 4 * T
            src = f"v[{c}:{c+3}]" if T in seen else "0"
            seen.add(T)
            ra = AF + 32 * (rho & 1) + 4 * S; rb = BF + 32 * (rho & 1) + 4 * u
            m = G.mfma(f"v_mfma_f32_16x16x32_bf16 v[{c}:{c+3}], v[{ra}:{ra+3}], v[{rb}:{rb+3}], {src}")
            G.add_pre(m, lambda rho=rho, S=S, u=u: st.wait(lg=[("A", rho, S), ("B", rho, u)]), cost=0)
    for f in reads(0)[:12]: f()
    G.place(0, reads(0)[12:], cap=2)
    for rho in range(7):
        G.place(36 * rho + 8, reads(rho + 1), cap=1)
    G.emit()
    a("s_nop 7")
    for T in range(8):
        c = ACC + 4 * T; o = AF + 2 * T
        a(f"v_cvt_pk_bf16_f32 v{o}, v{c}, v{c+1}"); a(f"v_cvt_pk_bf16_f32 v{o+1}, v{c+2}, v{c+3}")
        st.vmem(f"buffer_store_dwordx2 v[{o}:{o+1}], v{vY}, s[{sYT}:{sYT+3}], s{sT} offen offset:{T*512}{sc}", "yst")
    return BF + 64

def k_conv(a):
    n = "conv_kernel"; a.begin(n); st = St(a); stamp(a, 0)
    a(f"""
    s_cmp_ge_u32 s2, 576
    s_cbranch_scc1 L_cv_end
    s_load_dwordx2 s[16:17], s[0:1], {OFF['ws']}
    s_mov_b32 s23, 0
    s_waitcnt lgkmcnt(0)
    """)
    ws_srd(a, 4, 16, XT_OFF, XT_SZ); ws_srd(a, 8, 16, KR_OFF, KR_SZ); ws_srd(a, 12, 16, YT_OFF, YT_SZ)
    conv_loads(st, 2, 4, 8, 0, 23, 4, "", 40)
    if STAMP[0]:
        st.wait(vm="all"); stamp(a, 1); a("s_waitcnt lgkmcnt(0)")
    top = conv_compute(st, 2, 12, 0, 23, 4, "", 40)
    stamp(a, 2)
    a("s_waitcnt vmcnt(0)")
    stamp(a, 3); stamp_flush(a, 2, 4)
    a("L_cv_end:")
    a.end(n, 576, 64, CV_LDS, vgpr=192, accum=192)
    assert top <= 192, top

if __name__ == "__main__":
    a = Asm()
    if "stamp" in sys.argv: STAMP[0] = True
    k_pre(a); k_g1(a); k_conv(a); k_g2(a)
    open(sys.argv[1], "w").write(a.text(header()))
```

```python
from gen_conv import *
FL = 0x900000
F1 = FL; F2 = FL + 0x10000; FA = FL + 0x30000; FB = FL + 0x50000; F4 = FL + 0x70000
PB_OFF = 0x2200000
WS_SZ = 0x4000000
OOB = 0x40000000
TMO = 200000

class G2(Gaps):
    def __init__(self, st):
        super().__init__(st); self.iv = []
    def place_x(self, m, fs, cap=2, step=1):
        while True:
            cost = dict(self.cost); mm = m; pos = []
            for f in fs:
                while cost.get(mm, 0) + 1 > cap: mm += 1
                cost[mm] = cost.get(mm, 0) + 1; pos.append(mm); mm += step
            hit = [b for (x, b) in self.iv if not (pos[-1] < x or pos[0] > b)]
            if not hit: break
            m = max(hit) + 1
        for p, f in zip(pos, fs): self.add_gap(p, f)
        self.iv.append((pos[0], pos[-1]))
        return pos[-1]

def k_fused(a, RING=7, NW=5, XD=3, xstep=6, P=None):
    P = dict(P or {})
    n = NAME + "_kernel"; a.begin(n); stamp(a, 0)
    sc = " sc1"
    sWg, sWu, sW2, sWS, sWd, sX, sO, sDbg = 4, 8, 12, 16, 20, 24, 28, 76
    sw, sk, stt, sC, sg, sM, sM1, sXo = 32, 33, 34, 35, 36, 37, 38, 39
    sKS, sHo, sWo, sCh, sPo, sP8 = 40, 58, 67, 83, 100, 101
    P2B = RING * 8192; CVB = 163840 - 3 * CV_LDS; LNB = P2B + 36864; YB = 36864
    assert LNB <= CVB
    ACC = 0; ACC2 = 128; XV = 160; WR = 192; HD = 212; TMP = 216
    vTR = 232; vTR2 = 236; vW0 = 237; vW1 = 238; vW2 = 239; vX = 240; vX4 = 241; vH2 = 242; vl = 243
    t0, t1, t2, t3 = 244, 245, 246, 247
    vTok = 248; vPl = 250; vL0 = 252; vPa = 253; vD0 = 254; vD1 = 255
    WS = f"s[{sWS}:{sWS+3}]"
    slow = []
    def run(fs):
        for f in fs:
            if isinstance(f, str): a(f)
            else: f()
    def run_dma(fs):
        a(fs[0]); a("s_nop 0"); run(fs[1:])
    def check(loads, test):
        L = a.label("slow"); B = a.label("back")
        slow.append((L, B, loads, test))
        return list(test) + [f"s_cbranch_vccnz {L}\n{B}:"]
    a(f"""
    s_cmp_ge_u32 s2, 256
    s_cbranch_scc1 L_end
    s_load_dwordx2 s[{sX}:{sX+1}], s[0:1], {OFF['x']}
    s_load_dwordx2 s[{sWS}:{sWS+1}], s[0:1], {OFF['ws']}
    s_load_dwordx2 s[{sWg}:{sWg+1}], s[0:1], {OFF['wg']}
    s_load_dwordx2 s[{sWu}:{sWu+1}], s[0:1], {OFF['wu']}
    s_load_dwordx2 s[{sWd}:{sWd+1}], s[0:1], {OFF['wd']}
    s_load_dwordx2 s[{sO}:{sO+1}], s[0:1], {OFF['out']}
    s_load_dwordx2 s[{sDbg}:{sDbg+1}], s[0:1], {OFF['dbg']}
    v_lshrrev_b32 v{t0}, 6, v0
    v_and_b32 v{vl}, 63, v0
    s_mov_b32 s3, 0
    v_readfirstlane_b32 s{sw}, v{t0}
    """)
    for d, sz in ((sX, X_SZ), (sWS, WS_SZ), (sWg, W_SZ), (sWu, W_SZ + 1024), (sWd, W_SZ), (sO, X_SZ), (sDbg, 256), (sW2, W_SZ)):
        a(f"s_mov_b32 s{d+2}, {sz}"); a(f"s_mov_b32 s{d+3}, 0x00020000")
    a(f"s_cmp_lg_u32 s{sw}, 0")
    a("s_cbranch_scc1 L_kg")

    def setup():
        a(f"""
        s_and_b32 s{sk}, s2, 7
        s_bfe_u32 s{stt}, s2, 0x30003
        s_lshr_b32 s{sC}, s2, 6
        s_lshl_b32 s{sg}, s{stt}, 2
        s_add_u32 s{sg}, s{sg}, s{sw}
        s_lshl_b32 s{sM}, s{sw}, 11
        s_lshl_b32 s{sM1}, s{sw}, 10
        s_and_b32 s{sHo}, s{sw}, 1
        s_cselect_b32 s{sW2}, s{sWu}, s{sWg}
        s_cselect_b32 s{sW2+1}, s{sWu+1}, s{sWg+1}
        s_sub_u32 s{sWu}, s{sWu}, 1024
        s_subb_u32 s{sWu+1}, s{sWu+1}, 0
        v_lshrrev_b32 v{t0}, 3, v{vl}
        v_and_b32 v{t1}, 3, v{t0}
        v_xor_b32 v{t1}, s{sHo}, v{t1}
        v_lshlrev_b32 v{t1}, 1, v{t1}
        v_and_b32 v{t2}, 7, v{vl}
        v_xor_b32 v{t1}, v{t1}, v{t2}
        v_mul_u32_u24 v{t0}, 9216, v{t0}
        v_lshl_add_u32 v{t0}, v{t1}, 4, v{t0}
        s_mul_i32 s{sHo+1}, s{sw}, {8*9216}
        s_mul_i32 s{sHo+2}, s{sk}, 1152
        s_lshl_b32 s{sHo+3}, s{sC}, 7
        s_add_u32 s{sHo+1}, s{sHo+1}, s{sHo+2}
        s_add_u32 s{sHo+1}, s{sHo+1}, s{sHo+3}
        v_add_u32 v{vW0}, s{sHo+1}, v{t0}
        v_add_u32 v{vW1}, 640, v{vW0}
        v_lshrrev_b32 v{t0}, 1, v{vl}
        v_and_b32 v{t1}, 19, v{t0}
        v_bfe_u32 v{t2}, v{t0}, 2, 1
        v_lshl_add_u32 v{t1}, v{t2}, 3, v{t1}
        v_bfe_u32 v{t2}, v{t0}, 3, 1
        v_lshl_add_u32 v{t1}, v{t2}, 2, v{t1}
        v_mul_u32_u24 v{t1}, 9216, v{t1}
        v_and_b32 v{t2}, 1, v{vl}
        v_lshl_add_u32 v{t1}, v{t2}, 4, v{t1}
        s_lshr_b32 s{sHo+1}, s{sw}, 1
        s_mul_i32 s{sHo+1}, s{sHo+1}, 294912
        s_add_u32 s{sHo+1}, s{sHo+1}, s{sHo+2}
        s_lshl_b32 s{sHo+3}, s{sC}, 5
        s_add_u32 s{sHo+1}, s{sHo+1}, s{sHo+3}
        s_add_u32 s{sHo+1}, s{sHo+1}, 512
        v_add_u32 v{vW2}, s{sHo+1}, v{t1}
        """)
        for k in range(18): a(f"s_mov_b32 s{sKS+k}, {k*294912}")
    def setup2():
        a(f"""
        s_mul_i32 s{sXo}, s{sg}, 73728
        v_lshlrev_b32 v{vX}, 4, v{vl}
        v_add_u32 v{vX4}, 4096, v{vX}
        v_lshrrev_b32 v{t0}, 4, v{vl}
        v_bfe_u32 v{t1}, v{vl}, 2, 2
        v_and_b32 v{t2}, 3, v{vl}
        v_lshlrev_b32 v{t2}, 3, v{t2}
        v_lshl_add_u32 v{t3}, v{t1}, 7, v{t2}
        v_lshl_add_u32 v{t3}, v{t0}, 11, v{t3}
        v_lshl_add_u32 v{vTR2}, v{t1}, 5, v{t2}
        v_and_b32 v{t2}, 1, v{t0}
        v_lshl_add_u32 v{vTR2}, v{t2}, 7, v{vTR2}
        v_xor_b32 v{t1}, v{t1}, v{t2}
        v_lshrrev_b32 v{t0}, 1, v{t0}
        v_lshl_add_u32 v{vTR2}, v{t0}, 9, v{vTR2}
        v_add_u32 v{vTR2}, {P2B}, v{vTR2}
        """)
        for t in range(4):
            a(f"v_xor_b32 v{t0}, {t}, v{t1}")
            a(f"v_lshl_add_u32 v{vTR+t}, v{t0}, 5, v{t3}")
        a(f"s_mul_i32 s{sPo}, s{sk}, {32*73728}")
        a(f"s_add_u32 s{sPo}, s{sPo}, s{sXo}")
        a(f"s_add_u32 s{sPo}, s{sPo}, {HF_OFF}")
        a(f"s_mul_i32 s{sP8}, s{sk}, {576*1152}")
        for p in range(9):
            if p == 4: a(f"s_mov_b32 s{sWo+p}, 4")
            elif p < 4: a(f"s_xor_b32 s{sWo+p}, s{sC}, {p}")
            else:
                a(f"s_xor_b32 s{sWo+p}, s{sC}, {8-p}"); a(f"s_add_u32 s{sWo+p}, s{sWo+p}, 5")
            a(f"s_lshl_b32 s{sHo+p}, s{sWo+p}, 13")
            a(f"s_add_u32 s{sHo+p}, s{sHo+p}, s{sPo}")
            a(f"s_mul_i32 s{sWo+p}, s{sWo+p}, {64*1152}")
            a(f"s_add_u32 s{sWo+p}, s{sWo+p}, s{sP8}")
        a(f"""
        s_lshr_b32 s{sPo}, s{sC}, 1
        s_lshl_b32 s{sPo}, s{sPo}, 12
        s_and_b32 s{sP8}, s{sC}, 1
        s_lshl_b32 s{sP8}, s{sP8}, 9
        s_add_u32 s{sPo}, s{sPo}, s{sP8}
        v_lshrrev_b32 v{t0}, 5, v{vl}
        v_lshlrev_b32 v{t0}, 9, v{t0}
        v_add3_u32 v{vH2}, v{vX}, v{t0}, s{sPo}
        s_lshl_b32 s{sP8}, s{stt}, 2
        s_add_u32 s{sP8}, s{sP8}, s{sC}
        s_lshl_b32 s{sP8}, s{sP8}, 19
        s_add_u32 s{sP8}, s{sP8}, {PB_OFF}
        s_lshl_b32 s{sPo}, s{sk}, 16
        s_add_u32 s{sPo}, s{sPo}, s{sM}
        s_add_u32 s{sPo}, s{sPo}, s{sP8}
        s_lshl_b32 m0, s{sw}, 17
        s_add_u32 s{sP8}, s{sP8}, m0
        s_lshl_b32 m0, s{sk}, 10
        s_add_u32 s{sP8}, s{sP8}, m0
        v_min_u32 v{vL0}, 1, v{vl}
        v_lshlrev_b32 v{vL0}, 30, v{vL0}
        v_and_b32 v{vPa}, 7, v{vl}
        v_lshlrev_b32 v{vPa}, 7, v{vPa}
        """)
        a(f"""
        v_bfe_u32 v{t0}, v{vl}, 4, 1
        v_lshlrev_b32 v{t0}, 1, v{t0}
        v_and_b32 v{t1}, 3, v{vl}
        v_xor_b32 v{t0}, v{t0}, v{t1}
        v_lshlrev_b32 v{t0}, 4, v{t0}
        s_mul_i32 m0, s{sC}, 288
        v_add_u32 v{t0}, m0, v{t0}
        v_lshrrev_b32 v{t1}, 2, v{vl}
        s_lshl_b32 m0, s{sw}, 4
        v_add_u32 v{t2}, m0, v{t1}
        v_mul_u32_u24 v{vD0}, 1152, v{t2}
        v_add_u32 v{vD0}, v{vD0}, v{t0}
        v_and_b32 v{t1}, 39, v{t2}
        v_bfe_u32 v{t3}, v{t2}, 3, 1
        v_lshl_add_u32 v{t1}, v{t3}, 4, v{t1}
        v_bfe_u32 v{t3}, v{t2}, 4, 1
        v_lshl_add_u32 v{t1}, v{t3}, 3, v{t1}
        v_mul_u32_u24 v{vD1}, 1152, v{t1}
        v_add_u32 v{vD1}, v{vD1}, v{t0}
        """)
    tok_ld = f"buffer_load_dwordx2 v[{vTok}:{vTok+1}], off, s[{sDbg}:{sDbg+3}], 0{sc}"
    tok_t = [f"v_cmp_eq_u32 vcc, 0, v{vTok}"]
    def flag_st(st, so, tag=None):
        st.vmem(f"buffer_store_dwordx2 v[{vTok}:{vTok+1}], v{vL0}, {WS}, {so} offen{sc}", tag)
    def poll_ld(so): return f"buffer_load_dwordx2 v[{vPl}:{vPl+1}], v{vPa}, {WS}, {so} offen{sc}"
    poll_t = [f"v_cmp_ne_u64 vcc, v[{vPl}:{vPl+1}], v[{vTok}:{vTok+1}]"]

    a("s_waitcnt lgkmcnt(0)")
    st = St(a)
    def ln_hook():
        setup(); setup2(); a(f"s_mov_b32 s{sCh}, 1024")
    ln_wave(st, 2, sX, sWS, None, vl, LNB, sc=sc, sT=80, after_ld=ln_hook)
    a(tok_ld)
    a(f"s_lshl_b32 s80, s2, 7"); a(f"s_add_u32 s80, s80, {F1}")
    a("s_waitcnt vmcnt(0)")
    run(check([tok_ld], tok_t))
    flag_st(st, "s80")
    a("s_branch L_join")
    a("L_kg:")
    for i, k in enumerate(("lar", "aim", "cre", "cim", "ldt", "dsk")):
        a(f"s_load_dwordx2 s[{52+4*i}:{53+4*i}], s[0:1], {OFF[k]}")
    a(f"s_memrealtime s[{sPo}:{sPo+1}]")
    a(f"""
    s_lshl_b32 s{sCh}, s2, 1
    s_lshr_b32 s80, s{sw}, 1
    s_add_u32 s{sCh}, s{sCh}, s80
    s_add_u32 s80, s2, 512
    s_cmp_eq_u32 s{sw}, 2
    s_cselect_b32 s{sCh}, s80, s{sCh}
    """)
    for i in range(6):
        a(f"s_mov_b32 s{54+4*i}, {576 * 256 if i < 4 else 1152}"); a(f"s_mov_b32 s{55+4*i}, 0x00020000")
    a(f"""
    s_waitcnt lgkmcnt(0)
    s_cmp_lg_u32 s{sCh}, 0
    s_cbranch_scc1 L_notok
    s_or_b32 s{sPo}, s{sPo}, 1
    v_mov_b32 v{vTok}, s{sPo}
    v_mov_b32 v{vTok+1}, s{sPo+1}
    buffer_store_dwordx2 v[{vTok}:{vTok+1}], off, s[{sDbg}:{sDbg+3}], 0{sc}
    L_notok:
    """)
    st = St(a)
    def dma_stage(p, ks, v=None, dm=0):
        slot = (ks + (18 if p else 0)) % RING
        if v is None: v = vW1 if p else vW0
        return [f"s_add_u32 m0, s{sM}, {slot*8192+dm}",
                lambda: st.vmem(f"buffer_load_dwordx4 v{v}, s[{sWg}:{sWg+3}], s{sKS+ks} offen lds", ("w", p, ks)),
                lambda: st.vmem(f"buffer_load_dwordx4 v{v}, s[{sWu}:{sWu+3}], s{sKS+ks} offen offset:1024 lds", ("w", p, ks))]
    def dma_p2(nn, v=None, dm=0):
        return [f"s_add_u32 m0, s{sM1}, {P2B + nn*4096+dm}",
                lambda: st.vmem(f"buffer_load_dwordx4 v{v or vW2}, s[{sW2}:{sW2+3}], s{sKS+2*nn} offen lds", ("w2", nn))]
    def kg_hook():
        setup()
        for k in range(RING - 1): run_dma(dma_stage(0, k))
        for k in range(9): run_dma(dma_p2(k))
        keep = list(st.vm)
        a(f"s_cmp_lg_u32 s{sw}, 2"); a("s_cbranch_scc1 L_now0")
        a(f"v_subrev_u32 v{t0}, {16*9216}, v{vW0}"); a(f"v_subrev_u32 v{t1}, 294912, v{vW2}")
        for k in range(RING - 1): run_dma(dma_stage(0, k, t0, -4096))
        for k in range(9): run_dma(dma_p2(k, t1, -2048))
        nw2 = len(st.vm) - 6
        a("L_now0:")
        st.vm = keep
        setup2()
        a(f"s_mul_i32 s{sW2}, s{sw}, {CV_LDS}")
        a(f"s_add_u32 s{sW2+1}, s{sW2}, {CVB - CV_LDS + CV_KR}")
        a(f"s_add_u32 s{sW2}, s{sW2}, {CVB - CV_LDS + CV_KR - KG_LDS}")
        a(f"s_cmp_ge_u32 s{sCh}, 576"); a("s_cbranch_scc1 L_kgdone")
        a(f"s_waitcnt vmcnt({nw2})")
        a(f"s_cmp_eq_u32 s{sw}, 2"); a("s_cbranch_scc1 L_par")
        st.wait(vm="kg5")
        a("L_par:")
    assert LNB + 8 * 1344 <= CVB + CV_KR - KG_LDS
    top = kgen_wave(st, sCh, 52, None, vl, sW2, sT=80, sKL=sW2 + 1, after_ld=kg_hook)
    assert top <= 232, top
    a("L_kgdone:")
    a(tok_ld)
    a("L_join:")
    stamp(a, 1)
    a(f"s_lshl_b32 s80, s{sg}, 10"); a(f"s_add_u32 s80, s80, {F1}")
    a(poll_ld("s80"))
    a("s_waitcnt vmcnt(0) lgkmcnt(0)")
    run(check([tok_ld], tok_t))
    run(check([poll_ld("s80")], poll_t))

    st = St(a)
    def xreg(ks, t):
        return f"a[{16*ks+4*t}:{16*ks+4*t+3}]" if ks < 16 else f"v[{XV+16*(ks-16)+4*t}:{XV+16*(ks-16)+4*t+3}]"
    def xload(ks):
        fs = []
        for t in range(4):
            fs.append(lambda t=t: st.vmem(f"buffer_load_dwordx4 {xreg(ks,t)}, v{vX4 if ks & 1 else vX}, {WS}, s{sXo} offen offset:{t*1024}{sc}", ("x", ks, t)))
        if ks & 1: fs.append(f"s_add_u32 s{sXo}, s{sXo}, 8192")
        return fs
    for k in range(XD): run(xload(k))
    a("s_barrier")
    if STAMP[0]:
        stamp(a, 2); a("s_waitcnt lgkmcnt(0)")
    G = G2(st)
    frags = []
    for ks in range(18):
        for i in range(8): frags.append((0, ks, i))
    for ks in range(18):
        for i in range(2): frags.append((2, ks, i))
    for ks in range(18):
        for i in range(8): frags.append((1, ks, i))
    def rd(j):
        p, ks, i = frags[j]; w = WR + 4 * (j % NW)
        if p == 2:
            ad = vTR2; off = ks * 2048 + i * 1024; hs = 256
        else:
            slot = (ks + (18 if p else 0)) % RING
            ad = vTR + (i >> 1); off = slot * 8192 + (i & 1) * 1024; hs = 512
        return [lambda: st.lds(f"ds_read_b64_tr_b16 v[{w}:{w+1}], v{ad} offset:{off}", ("f", j)),
                lambda: st.lds(f"ds_read_b64_tr_b16 v[{w+2}:{w+3}], v{ad} offset:{off+hs}", ("f", j))]
    def accreg(p, i, t):
        if p == 2: return ACC2 + 16 * i + 4 * t
        return ACC + 16 * ((i >> 1) + 4 * (i & 1)) + 4 * t
    D = NW - 1
    first = {}
    for j, (p, ks, i) in enumerate(frags):
        w = WR + 4 * (j % NW)
        for t in range(4):
            c = accreg(p, i, t)
            src = "0" if ks == 0 else f"v[{c}:{c+3}]"
            m = G.mfma(f"v_mfma_f32_16x16x32_bf16 v[{c}:{c+3}], v[{w}:{w+3}], {xreg(ks,t)}, {src}")
            if t == 0:
                first.setdefault((p, ks), m)
                if p == 0 and i == 0:
                    G.add_pre(m, lambda j=j, ks=ks: st.wait(vm=("x", ks, 3 if ks else 0), lg=("f", j)))
                else:
                    G.add_pre(m, lambda j=j: st.wait(lg=("f", j)))
            elif p == 0 and i == 0 and ks == 0:
                G.add_pre(m, lambda t=t: st.wait(vm=("x", 0, t)))
    def bar(p, ks):
        def f():
            if p != 2 and not (p == 0 and ks < RING - 1): st.wait(vm=("w", p, ks))
            a("s_barrier")
        return f
    for j in range(D): run(rd(j))
    barpos = {}
    for j in range(len(frags) - D):
        p, ks, i = frags[j + D]
        if i == 0 and (p != 2 or ks == 0):
            G.add_pre(4 * j, bar(p, ks), cost=2)
            barpos[(p, ks)] = 4 * j
        r = rd(j + D)
        G.add_gap(4 * j, r[0]); G.add_gap(4 * j + 1, r[1])
    for ks in range(18):
        nx = ks + RING - 1
        mb = barpos[(0, ks + 1)] if ks < 17 else barpos[(2, 0)]
        G.place_x(mb + 2, dma_stage(0, nx) if nx < 18 else dma_stage(1, nx - 18))
    for ks in range(18):
        nx = ks + RING - 1
        if nx < 18: G.place_x(barpos[(1, ks + 1)] + 2, dma_stage(1, nx))
    m = 2
    for ks in range(XD, 18):
        for f in xload(ks):
            if isinstance(f, str): G.place(last + 1, [f])
            else:
                last = G.place(m, [f]); m += xstep
                assert last + 2 < m
        assert last < first[(0, ks)] - 40
    mx = last + 2
    XTd = ACC2; vA = ACC2 + 16; vB = ACC2 + 17; vZ = ACC2 + 18; Z4 = ACC2 + 20; PO = ACC2 + 24
    fs = f"""s_lshl_b32 s12, s{sC}, 3
    s_add_u32 s12, s12, s{sk}
    s_mul_i32 s13, s{sg}, 18
    s_add_u32 s13, s13, s12
    s_lshl_b32 s13, s13, 12
    s_mul_i32 s14, s12, {32*XT_STR}
    s_add_u32 s14, s14, {XT_OFF+96}
    s_lshl_b32 s15, s12, 5
    s_add_u32 s15, s15, s{sg}
    s_lshl_b32 s15, s15, 7
    s_add_u32 s15, s15, {F2}
    s_cmp_lt_u32 s12, 18\\ns_cselect_b32 s12, 0, {OOB}
    s_add_u32 s13, s13, s12
    s_add_u32 s14, s14, s12
    s_add_u32 s15, s15, s12
    s_cmp_eq_u32 s{sg}, 0\\ns_cselect_b32 s12, s14, {OOB}
    s_lshl_b32 s81, s{sg}, 7
    s_add_u32 s14, s14, s81
    v_lshrrev_b32 v{t0}, 5, v{vl}
    v_bfe_u32 v{t1}, v{vl}, 1, 1
    v_lshlrev_b32 v{t1}, 8, v{t1}
    v_lshl_add_u32 v{vA}, v{t0}, 10, v{t1}
    v_bfe_u32 v{t0}, v{vl}, 4, 1
    v_lshl_add_u32 v{vA}, v{t0}, 7, v{vA}
    v_bfe_u32 v{t0}, v{vl}, 2, 2
    v_lshl_add_u32 v{vA}, v{t0}, 4, v{vA}
    v_and_b32 v{t0}, 1, v{vl}
    v_lshl_add_u32 v{vA}, v{t0}, 3, v{vA}
    s_lshl_b32 s81, s{sw}, 12
    s_add_u32 s81, s81, {CVB}
    v_add_u32 v{vA}, s81, v{vA}
    v_lshrrev_b32 v{t1}, 1, v{vl}
    v_mul_u32_u24 v{t1}, {XT_STR}, v{t1}
    v_lshl_add_u32 v{vZ}, v{t0}, 4, v{t1}
    v_and_b32 v{t0}, 15, v{vl}
    v_mul_u32_u24 v{t0}, {XT_STR}, v{t0}
    v_and_b32 v{t1}, 48, v{vl}
    v_add_u32 v{vB}, v{t0}, v{t1}""".split("\n")
    fs = [f.strip().replace("\\n", "\n") for f in fs]
    fs += [f"v_mov_b32 v{Z4+i}, 0" for i in range(4)] + [f"v_mov_b32 v{PO+i}, -1" for i in range(4)]
    last = G.place(10, fs, cap=2)
    last = G.place_x(max(last + 1, mx - 60), ["s_mov_b32 m0, s81"] +
              [lambda t=t: st.vmem(f"buffer_load_dwordx4 v{vX}, {WS}, s13 offen offset:{t*1024}{sc} lds", "xtl") for t in range(4)])
    def pst(src, so, off, tag):
        return lambda: st.vmem(f"buffer_store_dwordx4 v[{src}:{src+3}], v{vX}, {WS}, {so} offen offset:{off}{sc}", tag)
    m = mx
    for s in range(7, 0, -1):
        G.place(m, [f"s_xor_b32 s82, s{sPo}, {(s<<16)|(s<<13)}", pst(PO, "s82", 0, "po"), pst(PO, "s82", 1024, "po")], step=4); m += 16
    G.place(m, [f"s_add_u32 s82, s{sP8}, 65536", pst(PO, f"s{sP8}", 0, "po"), pst(PO, "s82", 0, "po")], step=4); m += 16
    fs = [lambda: st.wait(vm="xtl")]
    for hf in range(2):
        for th in range(2):
            for r in range(2):
                d = XTd + 8 * hf + 4 * th + 2 * r
                fs.append(lambda d=d, o=th*2048+hf*512+r*64: st.lds(f"ds_read_b64_tr_b16 v[{d}:{d+1}], v{vA} offset:{o}", "xtr"))
    last = G.place(m, fs, step=1)
    fs = [lambda: st.wait(lg="xtr")]
    for hf in range(2):
        if hf: fs.append(f"s_add_u32 s14, s14, {16*XT_STR}")
        for th in range(2):
            d = XTd + 8 * hf + 4 * th
            fs.append(lambda d=d, th=th: st.vmem(f"buffer_store_dwordx4 v[{d}:{d+3}], v{vB}, {WS}, s14 offen offset:{32+th*64}{sc}", "xts"))
    fs.append(lambda: st.vmem(f"buffer_store_dwordx4 v[{Z4}:{Z4+3}], v{vZ}, {WS}, s12 offen{sc}", "xts"))
    last = G.place(last + 8, fs, step=3)
    assert last < first[(2, 0)] - 4, (last, first[(2, 0)])
    tcount = [0]
    def hst(src, p, kk, t):
        return lambda: st.vmem(f"buffer_store_dwordx4 v[{src}:{src+3}], v{vX4 if kk else vX}, {WS}, s{sHo+8*p} offen offset:{t*1024}{sc}", ("h", p))
    def epi_main(p, kks=(0, 1)):
        fs = []
        for kk in kks:
            for t in range(4):
                if p == 0:
                    tmp = TMP + 4 * (tcount[0] % 4); tcount[0] += 1
                else: tmp = XV + 16 * kk + 4 * t
                for hh in range(2):
                    g = ACC + 16 * (2 * kk + hh) + 4 * t; u = g + 64
                    for e in range(4): fs.append(f"v_mul_f32 v{g+e}, v{g+e}, v{u+e}")
                    fs.append(f"v_cvt_pk_bf16_f32 v{tmp+2*hh}, v{g}, v{g+1}")
                    fs.append(f"v_cvt_pk_bf16_f32 v{tmp+2*hh+1}, v{g+2}, v{g+3}")
                fs.append(hst(tmp, p, kk, t))
        return fs
    def epi2():
        fs = []
        for tp in range(2):
            tmp = TMP + 4 * (tcount[0] % 4); tcount[0] += 1
            for hh in range(2):
                g = ACC2 + 4 * (2 * tp + hh); u = g + 16
                for e in range(4): fs.append(f"v_mul_f32 v{g+e}, v{g+e}, v{u+e}")
                fs.append(f"v_cvt_pk_bf16_f32 v{tmp+2*hh}, v{g}, v{g+1}")
                fs.append(f"v_cvt_pk_bf16_f32 v{tmp+2*hh+1}, v{g+2}, v{g+3}")
            fs.append("s_nop 1")
            fs.append(f"v_permlane32_swap_b32 v{tmp}, v{tmp+2}")
            fs.append(f"v_permlane32_swap_b32 v{tmp+1}, v{tmp+3}")
            fs.append("s_nop 0")
            fs.append(lambda tmp=tmp, tp=tp: st.vmem(f"buffer_store_dwordx4 v[{tmp}:{tmp+3}], v{vH2}, {WS}, s{sHo+4} offen offset:{tp*2048}{sc}", ("h", 2)))
        return fs
    last = G.place(first[(2, 0)] + 8, epi_main(0))
    assert last < first[(1, 0)] - 4, (last, first[(1, 0)])
    G.place(last + 1, [lambda: st.wait(vm="xts"), lambda: flag_st(st, "s15")])
    last = G.place(first[(1, 0)] + 8, epi2())
    f1 = lambda ks: first[(1, ks)]
    def wd_dma(G, m, region, colexpr, tag, step=6):
        fs = colexpr + [f"v_add_u32 v{vW0}, s80, v{vD0}", f"v_add_u32 v{vW2}, s80, v{vD1}"]
        if G is None: run(fs)
        else: m = G.place(m, fs) + 1
        for p in range(9):
            fs = [f"s_add_u32 m0, s{sM1}, {region + p*4096}",
                  lambda p=p: st.vmem(f"buffer_load_dwordx4 v{vW2 if p == 4 else vW0}, s[{sWd}:{sWd+3}], s{sWo+p} offen lds", tag)]
            if G is None: run_dma(fs)
            else: m = max(G.place_x(m, fs) + 1, m + step)
        return m
    def paircol(i): return [f"s_xor_b32 s80, s{sk}, {2*i}", "s_lshr_b32 s80, s80, 1", "s_lshl_b32 s80, s80, 6"]
    last = wd_dma(G, max(last + 1, f1(1) + 4), P2B, ["s_mov_b32 s80, 256"], "wd8")
    a_off = [f"s_lshl_b32 s12, s2, 2", f"s_add_u32 s12, s12, s{sw}", "s_lshl_b32 s12, s12, 7", f"s_add_u32 s13, s12, {FB}", f"s_add_u32 s12, s12, {FA}"]
    last = G.place(max(last, f1(P.get("fa", 4))), a_off + [lambda: st.wait(vm=("h", 2)), lambda: flag_st(st, "s12")])
    fs = f"""s_lshr_b32 s14, s2, 4
    s_lshr_b32 s15, s2, 5
    s_add_u32 s15, s15, 16
    s_cmp_lt_u32 s2, 64\\ns_cselect_b32 s15, s15, s14
    s_sub_u32 s15, s15, s14
    s_lshl_b32 s15, s15, 12
    s_lshl_b32 s14, s14, 12
    s_add_u32 s14, s14, {F2}
    v_lshrrev_b32 v{t0}, 5, v{vl}
    v_mul_lo_u32 v{t0}, v{t0}, s15
    v_and_b32 v{t1}, 31, v{vl}
    v_lshl_add_u32 v{vPa}, v{t1}, 7, v{t0}""".split("\n")
    fs = [f.strip().replace("\\n", "\n") for f in fs]
    last = G.place(last + 1, fs + [lambda: st.vmem(poll_ld("s14"), "p2")])
    fs = f"""s_mul_i32 s15, s2, {2*XT_STR}
    s_lshl_b32 s81, s{sw}, 1
    s_add_u32 s81, s81, {XT_OFF+128}
    s_mul_i32 s82, s2, {XT_STR}
    s_add_u32 s82, s82, {512*XT_STR}
    s_cmp_lt_u32 s2, 64\\ns_cselect_b32 s82, s82, {OOB}
    s_add_u32 s82, s82, s81
    s_add_u32 s15, s15, s81
    s_mul_i32 s81, s{sw}, {CV_XS}
    s_mul_i32 s{sXo}, s{sCh}, {XT_STR}
    s_add_u32 s{sXo}, s{sXo}, {XT_OFF}
    v_and_b32 v{t1}, 6, v{vl}
    v_and_b32 v{t0}, 1, v{vl}
    v_lshl_add_u32 v{t1}, v{t0}, 4, v{t1}""".split("\n")
    fs = [f.strip().replace("\\n", "\n") for f in fs]
    last = G.place(last + 1, fs)
    last = G.place(max(last + 1, f1(P.get("p2c", 7))), [lambda: st.wait(vm="p2")] + check([poll_ld("s14")], poll_t))
    last = G.place(last + 1, [lambda: st.vmem(f"buffer_load_dwordx4 v[{HD}:{HD+3}], v{t1}, {WS}, s{sXo} offen offset:96{sc}", "cv")])
    for b, so in ((0, "s15"), (1, "s82"), (2, "s15")):
        if b == 2: last = G.place(last + 1, [f"s_add_u32 s15, s15, {XT_STR}"])
        last = G.place_x(last + 1, [f"s_add_u32 m0, s81, {CVB + b*CV_LDS + 32}"] +
                 [lambda i=i, so=so: st.vmem(f"buffer_load_dwordx4 v{vX}, {WS}, {so} offen offset:{i*1024}{sc} lds", "cv") for i in range(4)], step=3)
    fs = f"""v_and_b32 v{t0}, 7, v{vl}
    s_and_b32 s14, s2, 0xf8
    v_add_u32 v{t0}, s14, v{t0}
    v_and_b32 v{t1}, 3, v{vl}
    s_and_b32 s14, s2, 0x3f
    v_lshl_add_u32 v{t1}, v{t1}, 6, s14
    s_lshr_b32 s14, s{sk}, 1
    v_lshl_add_u32 v{t2}, v{t0}, 2, s14
    v_lshl_add_u32 v{t0}, v{t0}, 2, s{sw}
    v_lshl_add_u32 v{t1}, v{t1}, 2, s{sw}
    s_mov_b64 vcc, 0xff00
    v_cndmask_b32 v{t0}, v{t0}, v{t2}, vcc
    s_mov_b64 vcc, 0xffff
    v_cndmask_b32 v{t0}, v{t1}, v{t0}, vcc
    v_lshlrev_b32 v{vPa}, 7, v{t0}
    v_lshlrev_b32 v{t3}, 7, v{t1}
    s_mov_b32 s14, {FA}""".split("\n")
    fs = [f.strip() for f in fs]
    last = G.place(last + 1, fs + [lambda: st.vmem(poll_ld("s14"), "pa")])
    last = G.place(max(last + 50, f1(P.get("pac", 10))), [lambda: st.wait(vm="pa")] + check([poll_ld("s14")], poll_t) +
                   [f"v_mov_b32 v{vPa}, v{t3}", f"s_mov_b32 s14, {FB}"])
    def hload(s):
        return [lambda t=t: st.vmem(f"buffer_load_dwordx4 {xreg(s,t)}, v{vX4 if s & 1 else vX}, {WS}, s{sHo+(s>>1)} offen offset:{t*1024}{sc}", ("hl", s)) for t in range(4)]
    assert last >= f1(10)
    last = G.place(last + 1, sum([hload(s) for s in range(10)], []), step=P.get("hstep", 4))
    print("h loads end at", last, "of", len(G.mf), file=sys.stderr)
    if STAMP[0]:
        def mk(i):
            def f():
                st.wait(lg="all"); stamp(a, i); a("s_waitcnt lgkmcnt(0)")
            return f
        G.add_pre(first[(2, 0)], mk(3))
    G.place(f1(17) + 16 + 8, epi_main(1, (0,)))
    G.emit()
    a("s_nop 3")
    run(epi_main(1, (1,)))
    if STAMP[0]: mk(4)()
    st.wait(vm="cv", lg="all")
    a("s_barrier")
    wd_dma(None, 0, 0, paircol(3), "wdA")
    a(f"s_cmp_ge_u32 s{sCh}, 576"); a("s_cbranch_scc1 L_idle")
    late = sum([hload(s) for s in range(10, 16)], [])
    snap = (list(st.vm), st.vm_done, list(st.lg), st.lg_done)
    vA, vB, vY = TMP, TMP + 1, TMP + 2
    CA = 0; AF = 32; BF = 96
    a(f"""
    s_mul_i32 s80, s{sw}, {CV_LDS}
    s_add_u32 s80, s80, {CVB - CV_LDS}
    v_bfe_u32 v{t0}, v{vl}, 1, 2
    v_mul_u32_u24 v{t0}, {CV_XS}, v{t0}
    v_and_b32 v{t1}, 1, v{vl}
    v_lshl_add_u32 v{t0}, v{t1}, 4, v{t0}
    v_add_u32 v{t0}, s80, v{t0}
    """)
    st.lds(f"ds_write_b128 v{t0}, v[{HD}:{HD+3}]", "cvw")
    a(f"""
    v_and_b32 v{t1}, 15, v{vl}
    v_lshrrev_b32 v{t2}, 4, v{vl}
    v_lshlrev_b32 v{vY}, 5, v{t1}
    v_lshlrev_b32 v{vB}, 4, v{t2}
    v_sub_u32 v{vB}, v{vB}, v{vY}
    v_lshl_add_u32 v{vY}, v{t2}, 3, v{vY}
    s_add_u32 s81, s80, {CV_KR+480}
    v_add_u32 v{vB}, s81, v{vB}
    v_add_u32 v{t1}, 1, v{t1}
    v_and_b32 v{vA}, 3, v{t1}
    v_mul_u32_u24 v{vA}, {CV_XS}, v{vA}
    v_lshrrev_b32 v{t1}, 2, v{t1}
    v_lshl_add_u32 v{vA}, v{t1}, 3, v{vA}
    v_lshl_add_u32 v{vA}, v{t2}, 4, v{vA}
    v_add_u32 v{vA}, s80, v{vA}
    s_lshl_b32 s80, s{sCh}, 12
    s_add_u32 s80, s80, {YT_OFF}
    """)
    def rdA(rho, S):
        r = AF + 32 * (rho & 1) + 4 * S; off = 64 * (8 * S + rho)
        return [lambda: st.lds(f"ds_read_b64 v[{r}:{r+1}], v{vA} offset:{off}", ("A", rho, S)),
                lambda: st.lds(f"ds_read_b64 v[{r+2}:{r+3}], v{vA} offset:{off+8}", ("A", rho, S))]
    def rdB(rho, u):
        r = BF + 32 * (rho & 1) + 4 * u; off = 64 * (rho - 8 * u + 56)
        return [lambda: st.lds(f"ds_read_b128 v[{r}:{r+3}], v{vB} offset:{off}", ("B", rho, u))]
    pairs = sorted([(S, u) for S in range(8) for u in range(8 - S)], key=lambda p: (max(p), p))
    def reads(rho):
        fs = []
        for i in range(8): fs += rdA(rho, i) + rdB(rho, i)
        return fs
    G = G2(st)
    seen = set()
    for rho in range(8):
        for (S, u) in pairs:
            T = S + u; c = CA + 4 * T
            src = f"v[{c}:{c+3}]" if T in seen else "0"
            seen.add(T)
            ra = AF + 32 * (rho & 1) + 4 * S; rb = BF + 32 * (rho & 1) + 4 * u
            m = G.mfma(f"v_mfma_f32_16x16x32_bf16 v[{c}:{c+3}], v[{ra}:{ra+3}], v[{rb}:{rb+3}], {src}")
            G.add_pre(m, lambda rho=rho, S=S, u=u: st.wait(lg=[("A", rho, S), ("B", rho, u)]), cost=0)
    for f in reads(0)[:12]: f()
    G.place(0, reads(0)[12:], cap=2)
    for rho in range(7):
        G.place(36 * rho + 8, reads(rho + 1), cap=1)
    pubB = [lambda: st.wait(vm=("h", 1)), lambda: flag_st(st, "s13")]
    G.place(P.get("fb", 80), pubB)
    G.place(P.get("pb", 150), [lambda: st.vmem(poll_ld("s14"), "pb")])
    last = G.place(P.get("pbc", 225), [lambda: st.wait(vm="pb")] + check([poll_ld("s14")], poll_t))
    last = G.place(last + 1, late, step=2)
    G.emit()
    a("s_nop 7")
    for T in range(8):
        c = CA + 4 * T; o = AF + 2 * T
        a(f"v_cvt_pk_bf16_f32 v{o}, v{c}, v{c+1}"); a(f"v_cvt_pk_bf16_f32 v{o+1}, v{c+2}, v{c+3}")
        st.vmem(f"buffer_store_dwordx2 v[{o}:{o+1}], v{vY}, {WS}, s80 offen offset:{T*512}{sc}", "yst")
    a(f"s_lshl_b32 s12, s{sCh}, 7"); a(f"s_add_u32 s12, s12, {F4}")
    a("s_branch L_g2")
    snap2 = (list(st.vm), st.vm_done)
    a("L_idle:")
    st.vm, st.vm_done, st.lg, st.lg_done = snap
    run(pubB); st.vmem(poll_ld("s14"), "pb"); st.wait(vm="pb"); run(check([poll_ld("s14")], poll_t)); run(late)
    a(f"s_mov_b32 s12, {OOB}")
    for T in range(8): st.vmem(f"buffer_store_dword v0, v{vX}, {WS}, s12 offen", "yst")
    assert st.vm == snap2[0] and st.vm_done == snap2[1]
    a("L_g2:")
    if STAMP[0]: mk(5)()
    AC = 0; PK = 48; SUM = 64; S8 = 80; IN = 84; IN8 = 116; XR = 132; X8 = 140; YR = 142; Y8 = 150; U = 152
    vR = TMP
    vXO = TMP + 7; vXO8 = TMP + 8; vI8 = TMP + 9; vYr = TMP + 10; vYr8 = TMP + 11; vYs = TMP + 12; vYs8 = TMP + 13
    RA, RB, RC = 0, CVB, P2B
    a(f"""
    v_lshrrev_b32 v{t0}, 2, v{vl}
    v_and_b32 v{t1}, 3, v{vl}
    v_lshlrev_b32 v{t1}, 3, v{t1}
    v_lshl_add_u32 v{t0}, v{t0}, 6, v{t1}
    v_bfe_u32 v{t1}, v{vl}, 4, 1
    v_lshl_add_u32 v{t0}, v{t1}, 5, v{t0}
    v_add_u32 v{vR+6}, {RC}, v{t0}
    s_and_b32 s80, s{sk}, 1
    s_lshl_b32 s80, s80, 5
    v_xor_b32 v{vR+1}, s80, v{t0}
    v_xor_b32 v{vR}, 32, v{vR+1}
    """)
    st.wait(vm="wdA", lg="all")
    a("s_barrier")
    G = G2(st)
    order0 = list(range(10)) + [16, 17] + list(range(10, 16))
    fr = []
    for s_ in order0:
        fr.append((8, s_, vR + 6, AC)); fr.append((7, s_, vR, AC + 16))
    areg = {6: vR + 1, 5: vR + 2, 4: vR + 3, 3: vR + 4, 2: vR + 5, 1: vR, 0: vR + 1}
    accof = {8: AC, 7: AC + 16}
    for i, s in enumerate(range(6, -1, -1)):
        accof[s] = AC + 16 * ((i + 2) % 3)
        for s_ in range(18): fr.append((s, s_, areg[s], accof[s]))
    def rd2(j):
        s, s_, ad, _ = fr[j]; w = WR + 4 * (j % NW)
        return [lambda: st.lds(f"ds_read_b64_tr_b16 v[{w}:{w+1}], v{ad} offset:{s_*2048}", ("g", j)),
                lambda: st.lds(f"ds_read_b64_tr_b16 v[{w+2}:{w+3}], v{ad} offset:{s_*2048+1024}", ("g", j))]
    started = set(); T_ = {}
    for j, (s, s_, ad, acc) in enumerate(fr):
        w = WR + 4 * (j % NW)
        for t in range(4):
            c = acc + 4 * t
            src = f"v[{c}:{c+3}]" if s in started else "0"
            m = G.mfma(f"v_mfma_f32_16x16x32_bf16 v[{c}:{c+3}], v[{w}:{w+3}], {xreg(s_,t)}, {src}")
            if t == 0: G.add_pre(m, lambda j=j, s=s, s_=s_: st.wait(vm=("hl", s_) if (s == 8 and s_ < 16) else None, lg=("g", j)))
        started.add(s); T_[s] = m + 1
    T_[8] = T_[7]
    for j in range(D): run(rd2(j))
    def bar2(tag):
        def f():
            if tag: st.wait(vm=tag)
            a("s_barrier")
        return f
    for j in range(len(fr) - D):
        s, s_, _, _ = fr[j + D]
        if s_ == 0 and s in (5, 3, 1): G.add_pre(4 * j, bar2({5: "wdB", 3: "wdC", 1: "wdD"}[s]), cost=2)
        r = rd2(j + D)
        G.add_gap(4 * j, r[0]); G.add_gap(4 * j + 1, r[1])
    G.add_pre(T_[7] + 2, bar2(None)); G.add_pre(T_[6] + 2, bar2(None))
    last = wd_dma(G, 1, RB, paircol(2), "wdB")
    fs = f"""v_add_u32 v{vR+2}, {RB}, v{vR}
    v_add_u32 v{vR+3}, {RB}, v{vR+1}
    v_add_u32 v{vR+4}, {RC}, v{vR}
    v_add_u32 v{vR+5}, {RC}, v{vR+1}
    v_and_b32 v{t0}, 15, v{vl}
    v_mul_u32_u24 v{vXO}, 1152, v{t0}
    v_lshrrev_b32 v{t1}, 4, v{vl}
    v_lshl_add_u32 v{vXO}, v{t1}, 3, v{vXO}
    s_lshr_b32 s13, s{sw}, 1
    s_lshl_b32 s13, s13, 30
    v_add_u32 v{vXO8}, s13, v{vXO}
    s_and_b32 s15, s{sw}, 1
    s_lshl_b32 s81, s15, 3
    s_add_u32 s13, s13, s81
    v_add_u32 v{vI8}, s13, v{vX}
    s_mul_i32 s13, s{sw}, 3072
    s_add_u32 s13, s13, {YB}
    v_lshrrev_b32 v{t0}, 2, v{vl}
    v_and_b32 v{t1}, 3, v{vl}
    v_lshl_add_u32 v{t2}, v{t1}, 3, s13
    v_lshl_add_u32 v{vYr}, v{t0}, 7, v{t2}
    v_lshl_add_u32 v{vYr8}, v{t0}, 6, v{t2}
    s_lshl_b32 s81, s15, 5
    v_add_u32 v{vYr8}, s81, v{vYr8}
    v_lshlrev_b32 v{t1}, 4, v{t1}
    v_lshl_add_u32 v{vYs8}, v{t0}, 12, v{t1}
    v_lshrrev_b32 v{t0}, 3, v{vl}
    v_and_b32 v{t1}, 7, v{vl}
    v_lshlrev_b32 v{t1}, 4, v{t1}
    v_lshl_add_u32 v{vYs}, v{t0}, 12, v{t1}
    s_mul_i32 s76, s{sC}, 144
    s_lshl_b32 s81, s{sk}, 4
    s_add_u32 s77, s76, 128
    s_add_u32 s76, s76, s81
    s_sub_u32 s81, s77, s76
    s_sub_u32 s81, s81, 16
    v_bfe_u32 v{t0}, v{vl}, 4, 1
    v_mul_lo_u32 v{t0}, v{t0}, s81
    v_and_b32 v{t1}, 31, v{vl}
    v_add_lshl_u32 v{vPa}, v{t0}, v{t1}, 7
    s_lshl_b32 s14, s76, 7
    s_add_u32 s14, s14, {F4}
    s_lshl_b32 s78, s{stt}, 3
    s_add_u32 s78, s78, s{sk}
    s_lshl_b32 s40, s76, 12
    s_lshl_b32 s81, s{sg}, 7
    s_add_u32 s40, s40, s81
    s_add_u32 s40, s40, {YT_OFF}
    s_add_u32 s41, s40, {8*4096 - 1024}
    s_lshl_b32 s42, s77, 12
    s_lshl_b32 s81, s78, 6
    s_add_u32 s42, s42, s81
    s_add_u32 s42, s42, {YT_OFF - 2048}
    s_mul_i32 s44, s{sg}, {64*1152}
    s_lshl_b32 s81, s76, 1
    s_add_u32 s44, s44, s81
    s_add_u32 s45, s44, {16*1152}
    s_add_u32 s46, s44, {32*1152}
    s_add_u32 s47, s44, {48*1152}
    s_lshl_b32 s48, s78, 1
    s_add_u32 s48, s48, s15
    s_mul_i32 s48, s48, {16*1152}
    s_lshl_b32 s81, s77, 1
    s_add_u32 s48, s48, s81
    s_and_b32 s49, s{sPo}, 0xffff0000
    s_add_u32 s50, s49, 4096
    s_mov_b32 s51, 0xffff0000""".split("\n")
    last = G.place(6, [f.strip() for f in fs])
    last = G.place(max(last + 1, P.get("f4", 100)), [lambda: st.wait(vm="yst"), lambda: flag_st(st, "s12")])
    assert last < T_[7]
    pk = [0]
    def epi(s):
        fs = []; acc = accof[s]
        if s == 8: fs.append(f"s_add_u32 s82, s{sP8}, 65536")
        else: fs.append(f"s_xor_b32 s82, s{sPo}, {(s<<16)|(s<<13)}")
        for h in range(2):
            o = PK + 4 * (pk[0] % 4); pk[0] += 1
            for i in range(4): fs.append(f"v_cvt_pk_bf16_f32 v{o+i}, v{acc+8*h+2*i}, v{acc+8*h+2*i+1}")
            fs.append(f"v_min_u32 v{o}, -2, v{o}")
            if s == 8:
                fs.append(f"v_min_u32 v{o+2}, -2, v{o+2}")
                fs.append(pst(o, "s82" if h else f"s{sP8}", 0, ("ps", s)))
            else: fs.append(pst(o, "s82", 1024 * h, ("ps", s)))
        return fs
    def inreg(s): return IN + 8 * (s % 4)
    def pld(s): return [f"buffer_load_dwordx4 v[{inreg(s)+4*h}:{inreg(s)+4*h+3}], v{vX}, {WS}, s{52+(s%4)} offen offset:{1024*h}{sc}" for h in range(2)]
    def pload(s): return [f"s_xor_b32 s{52+(s%4)}, s{sPo}, {s<<13}"] + [lambda l=l: st.vmem(l, ("pl", s)) for l in pld(s)]
    uc = [0]
    def addpk(dst, src, n_, init=False):
        fs = []
        for i in range(n_):
            if init:
                fs += [f"v_lshlrev_b32 v{dst+2*i}, 16, v{src+i}", f"v_and_b32 v{dst+2*i+1}, s51, v{src+i}"]
            else:
                u = U + 2 * (uc[0] % 4); uc[0] += 1
                fs += [f"v_lshlrev_b32 v{u}, 16, v{src+i}", f"v_and_b32 v{u+1}, s51, v{src+i}",
                       f"v_add_f32 v{dst+2*i}, v{dst+2*i}, v{u}", f"v_add_f32 v{dst+2*i+1}, v{dst+2*i+1}, v{u+1}"]
        return fs
    def padd(s):
        r = inreg(s)
        return [lambda: st.wait(vm=("pl", s))] + check(pld(s), [f"v_max_u32 v{t0}, v{r}, v{r+4}", f"v_cmp_eq_u32 vcc, -1, v{t0}"]) + addpk(SUM, r, 8)
    ld8 = [f"buffer_load_dwordx2 v[{IN8+2*i}:{IN8+2*i+1}], v{vI8}, {WS}, s{49+(i>>2)} offen offset:{1024*(i&3)}{sc}" for i in range(8)]
    t8 = [f"v_max3_u32 v{t0}, v{IN8}, v{IN8+2}, v{IN8+4}", f"v_max3_u32 v{t1}, v{IN8+6}, v{IN8+8}, v{IN8+10}",
          f"v_max3_u32 v{t0}, v{t0}, v{IN8+12}, v{IN8+14}", f"v_max_u32 v{t0}, v{t0}, v{t1}", f"v_cmp_eq_u32 vcc, -1, v{t0}"]
    E = 8
    last = G.place(T_[7] + E, epi(8) + epi(7))
    last = wd_dma(G, last + 1, RC, paircol(1), "wdC", step=3)
    assert last < T_[6] + E, (last, T_)
    last = G.place(T_[6] + E, epi(6))
    last = wd_dma(G, last + 1, RA, paircol(0), "wdD", step=3)
    fs = [lambda t=t: st.vmem(f"buffer_load_dwordx2 v[{XR+2*t}:{XR+2*t+1}], v{vXO}, s[{sX}:{sX+3}], s{44+t} offen", "xr") for t in range(4)]
    fs.append(lambda: st.vmem(f"buffer_load_dwordx2 v[{X8}:{X8+1}], v{vXO8}, s[{sX}:{sX+3}], s48 offen", "xr"))
    last = G.place(last + 1, fs, step=1)
    assert last < T_[5], (last, T_)
    last = G.place(T_[5], pload(7) + [lambda: st.vmem(poll_ld("s14"), "p4")], step=1)
    last = G.place(max(last + 1, T_[5] + E), epi(5))
    last = G.place(last + 1, [lambda l=l: st.vmem(l, "p8") for l in ld8], step=2)
    last = G.place(last + 1, [lambda: st.wait(vm="xr")] + addpk(SUM, XR, 8, True) + addpk(S8, X8, 2, True))
    assert last < T_[4], (last, T_)
    last = G.place(T_[4], pload(6), step=1)
    last = G.place(last + 1, [lambda: st.wait(vm="p4")] + check([poll_ld("s14")], poll_t))
    last = G.place_x(last + 1, ["s_mov_b32 m0, s13",
        lambda: st.vmem(f"buffer_load_dwordx4 v{vYs}, {WS}, s40 offen{sc} lds", "yl"),
        lambda: st.vmem(f"buffer_load_dwordx4 v{vYs}, {WS}, s41 offen offset:1024{sc} lds", "yl"),
        lambda: st.vmem(f"buffer_load_dwordx4 v{vYs8}, {WS}, s42 offen offset:2048{sc} lds", "yl")])
    last = G.place(last + 1, epi(4))
    last = G.place(last + 1, padd(7))
    assert last < T_[3], (last, T_)
    last = G.place(T_[3], pload(5), step=1)
    last = G.place(max(last + 1, T_[3] + E), epi(3))
    last = G.place(last + 1, padd(6))
    fs = [lambda: st.wait(vm="yl")]
    fs += [lambda t=t: st.lds(f"ds_read_b64_tr_b16 v[{YR+2*t}:{YR+2*t+1}], v{vYr} offset:{32*t}", "yr") for t in range(4)]
    fs += [lambda: st.lds(f"ds_read_b64_tr_b16 v[{Y8}:{Y8+1}], v{vYr8} offset:2048", "yr")]
    last = G.place(last + 1, fs, step=1)
    assert last < T_[2], (last, T_)
    last = G.place(T_[2], pload(4), step=1)
    last = G.place(max(last + 1, T_[2] + E), epi(2))
    last = G.place(last + 1, padd(5))
    last = G.place(last + 1, pload(3), step=1)
    assert last < T_[1], (last, T_)
    last = G.place(T_[1] + 4, epi(1))
    last = G.place(last + 1, padd(4))
    last = G.place(last + 1, pload(2), step=1)
    last = G.place(max(last + 1, T_[0] - P.get("l1", 4)), pload(1), step=1)
    print("g2 fillers end at", last, "of", len(G.mf), file=sys.stderr)
    G.emit()
    if STAMP[0]: mk(6)()
    st.wait(lg="all")
    run(addpk(SUM, YR, 8) + addpk(S8, Y8, 2))
    st.wait(vm="p8"); run(check(ld8, t8))
    for i in range(8): run(addpk(S8, IN8 + 2 * i, 2))
    a(f"v_cvt_pk_bf16_f32 v{PK}, v{S8}, v{S8+1}"); a(f"v_cvt_pk_bf16_f32 v{PK+1}, v{S8+2}, v{S8+3}")
    st.vmem(f"buffer_store_dwordx2 v[{PK}:{PK+1}], v{vXO8}, s[{sO}:{sO+3}], s48 offen", "o")
    for i in range(16): a(f"v_add_f32 v{SUM+i}, v{SUM+i}, v{accof[0]+i}")
    run(padd(3)); run(padd(2)); run(padd(1))
    for t in range(4):
        o = PK + 4 + 2 * t
        a(f"v_cvt_pk_bf16_f32 v{o}, v{SUM+4*t}, v{SUM+4*t+1}"); a(f"v_cvt_pk_bf16_f32 v{o+1}, v{SUM+4*t+2}, v{SUM+4*t+3}")
        st.vmem(f"buffer_store_dwordx2 v[{o}:{o+1}], v{vXO}, s[{sO}:{sO+3}], s{44+t} offen", "o")
    if STAMP[0]:
        a("s_waitcnt vmcnt(0)"); stamp(a, 7); stamp_flush(a, 0, 8, sw)
    a("L_end:")
    a("s_endpgm")
    for (L, B, loads, test) in slow:
        a(f"{L}:")
        a("s_add_u32 s3, s3, 1"); a(f"s_cmp_gt_u32 s3, {TMO}"); a("s_cbranch_scc1 L_end2")
        run(loads); a("s_waitcnt vmcnt(0)"); run(test)
        a(f"s_cbranch_vccnz {L}"); a(f"s_branch {B}")
    a("L_end2:")
    a.end(n, 256, 256, 163840, vgpr=512, accum=256)

def build_text(hdr="", **kw):
    a = Asm(); k_fused(a, **kw)
    return a.text(hdr, single=True)

if __name__ == "__main__":
    if "stamp" in sys.argv: STAMP[0] = True
    open(sys.argv[1], "w").write(build_text(header()))
```

```python
from gen_conv import *
FL = 0x900000
F1 = FL; F2 = FL + 0x10000; FA = FL + 0x30000; FB = FL + 0x50000; F4 = FL + 0x70000
PB_OFF = 0x2200000
WS_SZ = 0x4000000
OOB = 0x40000000
TMO = 200000

class G2(Gaps):
    def __init__(self, st):
        super().__init__(st); self.iv = []
    def place_x(self, m, fs, cap=2, step=1):
        while True:
            cost = dict(self.cost); mm = m; pos = []
            for f in fs:
                while cost.get(mm, 0) + 1 > cap: mm += 1
                cost[mm] = cost.get(mm, 0) + 1; pos.append(mm); mm += step
            hit = [b for (x, b) in self.iv if not (pos[-1] < x or pos[0] > b)]
            if not hit: break
            m = max(hit) + 1
        for p, f in zip(pos, fs): self.add_gap(p, f)
        self.iv.append((pos[0], pos[-1]))
        return pos[-1]

def k_fused(a, RING=7, NW=5, XD=3, xstep=6, P=None):
    P = dict(P or {})
    n = NAME + "_kernel"; a.begin(n); stamp(a, 0)
    sc = " sc1"
    sWg, sWu, sW2, sWS, sWd, sX, sO, sDbg = 4, 8, 12, 16, 20, 24, 28, 76
    sw, sk, stt, sC, sg, sM, sM1, sXo = 32, 33, 34, 35, 36, 37, 38, 39
    sKS, sHo, sWo, sCh, sPo, sP8 = 40, 58, 67, 83, 100, 101
    P2B = RING * 8192; CVB = 163840 - 3 * CV_LDS; LNB = P2B + 36864; YB = 36864
    assert LNB <= CVB
    ACC = 0; ACC2 = 128; XV = 160; WR = 192; HD = 212; TMP = 216
    vTR = 232; vTR2 = 236; vW0 = 237; vW1 = 238; vW2 = 239; vX = 240; vX4 = 241; vH2 = 242; vl = 243
    t0, t1, t2, t3 = 244, 245, 246, 247
    vTok = 248; vPl = 250; vL0 = 252; vPa = 253; vD0 = 254; vD1 = 255
    WS = f"s[{sWS}:{sWS+3}]"
    slow = []
    def run(fs):
        for f in fs:
            if isinstance(f, str): a(f)
            else: f()
    def run_dma(fs):
        a(fs[0]); a("s_nop 0"); run(fs[1:])
    def check(loads, test):
        L = a.label("slow"); B = a.label("back")
        slow.append((L, B, loads, test))
        return list(test) + [f"s_cbranch_vccnz {L}\n{B}:"]
    a(f"""
    s_cmp_ge_u32 s2, 256
    s_cbranch_scc1 L_end
    s_load_dwordx2 s[{sX}:{sX+1}], s[0:1], {OFF['x']}
    s_load_dwordx2 s[{sWS}:{sWS+1}], s[0:1], {OFF['ws']}
    s_load_dwordx2 s[{sWg}:{sWg+1}], s[0:1], {OFF['wg']}
    s_load_dwordx2 s[{sWu}:{sWu+1}], s[0:1], {OFF['wu']}
    s_load_dwordx2 s[{sWd}:{sWd+1}], s[0:1], {OFF['wd']}
    s_load_dwordx2 s[{sO}:{sO+1}], s[0:1], {OFF['out']}
    s_load_dwordx2 s[{sDbg}:{sDbg+1}], s[0:1], {OFF['dbg']}
    v_lshrrev_b32 v{t0}, 6, v0
    v_and_b32 v{vl}, 63, v0
    s_mov_b32 s3, 0
    v_readfirstlane_b32 s{sw}, v{t0}
    """)
    for d, sz in ((sX, X_SZ), (sWS, WS_SZ), (sWg, W_SZ), (sWu, W_SZ + 1024), (sWd, W_SZ), (sO, X_SZ), (sDbg, 256), (sW2, W_SZ)):
        a(f"s_mov_b32 s{d+2}, {sz}"); a(f"s_mov_b32 s{d+3}, 0x00020000")
    a(f"s_cmp_lg_u32 s{sw}, 0")
    a("s_cbranch_scc1 L_kg")

    def setup():
        a(f"""
        s_and_b32 s{sk}, s2, 7
        s_bfe_u32 s{stt}, s2, 0x30003
        s_lshr_b32 s{sC}, s2, 6
        s_lshl_b32 s{sg}, s{stt}, 2
        s_add_u32 s{sg}, s{sg}, s{sw}
        s_lshl_b32 s{sM}, s{sw}, 11
        s_lshl_b32 s{sM1}, s{sw}, 10
        s_and_b32 s{sHo}, s{sw}, 1
        s_cselect_b32 s{sW2}, s{sWu}, s{sWg}
        s_cselect_b32 s{sW2+1}, s{sWu+1}, s{sWg+1}
        s_sub_u32 s{sWu}, s{sWu}, 1024
        s_subb_u32 s{sWu+1}, s{sWu+1}, 0
        v_lshrrev_b32 v{t0}, 3, v{vl}
        v_and_b32 v{t1}, 3, v{t0}
        v_xor_b32 v{t1}, s{sHo}, v{t1}
        v_lshlrev_b32 v{t1}, 1, v{t1}
        v_and_b32 v{t2}, 7, v{vl}
        v_xor_b32 v{t1}, v{t1}, v{t2}
        v_mul_u32_u24 v{t0}, 9216, v{t0}
        v_lshl_add_u32 v{t0}, v{t1}, 4, v{t0}
        s_mul_i32 s{sHo+1}, s{sw}, {8*9216}
        s_mul_i32 s{sHo+2}, s{sk}, 1152
        s_lshl_b32 s{sHo+3}, s{sC}, 7
        s_add_u32 s{sHo+1}, s{sHo+1}, s{sHo+2}
        s_add_u32 s{sHo+1}, s{sHo+1}, s{sHo+3}
        v_add_u32 v{vW0}, s{sHo+1}, v{t0}
        v_add_u32 v{vW1}, 640, v{vW0}
        v_lshrrev_b32 v{t0}, 1, v{vl}
        v_and_b32 v{t1}, 19, v{t0}
        v_bfe_u32 v{t2}, v{t0}, 2, 1
        v_lshl_add_u32 v{t1}, v{t2}, 3, v{t1}
        v_bfe_u32 v{t2}, v{t0}, 3, 1
        v_lshl_add_u32 v{t1}, v{t2}, 2, v{t1}
        v_mul_u32_u24 v{t1}, 9216, v{t1}
        v_and_b32 v{t2}, 1, v{vl}
        v_lshl_add_u32 v{t1}, v{t2}, 4, v{t1}
        s_lshr_b32 s{sHo+1}, s{sw}, 1
        s_mul_i32 s{sHo+1}, s{sHo+1}, 294912
        s_add_u32 s{sHo+1}, s{sHo+1}, s{sHo+2}
        s_lshl_b32 s{sHo+3}, s{sC}, 5
        s_add_u32 s{sHo+1}, s{sHo+1}, s{sHo+3}
        s_add_u32 s{sHo+1}, s{sHo+1}, 512
        v_add_u32 v{vW2}, s{sHo+1}, v{t1}
        """)
        for k in range(18): a(f"s_mov_b32 s{sKS+k}, {k*294912}")
    def setup2():
        a(f"""
        s_mul_i32 s{sXo}, s{sg}, 73728
        v_lshlrev_b32 v{vX}, 4, v{vl}
        v_add_u32 v{vX4}, 4096, v{vX}
        v_lshrrev_b32 v{t0}, 4, v{vl}
        v_bfe_u32 v{t1}, v{vl}, 2, 2
        v_and_b32 v{t2}, 3, v{vl}
        v_lshlrev_b32 v{t2}, 3, v{t2}
        v_lshl_add_u32 v{t3}, v{t1}, 7, v{t2}
        v_lshl_add_u32 v{t3}, v{t0}, 11, v{t3}
        v_lshl_add_u32 v{vTR2}, v{t1}, 5, v{t2}
        v_and_b32 v{t2}, 1, v{t0}
        v_lshl_add_u32 v{vTR2}, v{t2}, 7, v{vTR2}
        v_xor_b32 v{t1}, v{t1}, v{t2}
        v_lshrrev_b32 v{t0}, 1, v{t0}
        v_lshl_add_u32 v{vTR2}, v{t0}, 9, v{vTR2}
        v_add_u32 v{vTR2}, {P2B}, v{vTR2}
        """)
        for t in range(4):
            a(f"v_xor_b32 v{t0}, {t}, v{t1}")
            a(f"v_lshl_add_u32 v{vTR+t}, v{t0}, 5, v{t3}")
        a(f"s_mul_i32 s{sPo}, s{sk}, {32*73728}")
        a(f"s_add_u32 s{sPo}, s{sPo}, s{sXo}")
        a(f"s_add_u32 s{sPo}, s{sPo}, {HF_OFF}")
        a(f"s_mul_i32 s{sP8}, s{sk}, {576*1152}")
        for p in range(9):
            if p == 4: a(f"s_mov_b32 s{sWo+p}, 4")
            elif p < 4: a(f"s_xor_b32 s{sWo+p}, s{sC}, {p}")
            else:
                a(f"s_xor_b32 s{sWo+p}, s{sC}, {8-p}"); a(f"s_add_u32 s{sWo+p}, s{sWo+p}, 5")
            a(f"s_lshl_b32 s{sHo+p}, s{sWo+p}, 13")
            a(f"s_add_u32 s{sHo+p}, s{sHo+p}, s{sPo}")
            a(f"s_mul_i32 s{sWo+p}, s{sWo+p}, {64*1152}")
            a(f"s_add_u32 s{sWo+p}, s{sWo+p}, s{sP8}")
        a(f"""
        s_lshr_b32 s{sPo}, s{sC}, 1
        s_lshl_b32 s{sPo}, s{sPo}, 12
        s_and_b32 s{sP8}, s{sC}, 1
        s_lshl_b32 s{sP8}, s{sP8}, 9
        s_add_u32 s{sPo}, s{sPo}, s{sP8}
        v_lshrrev_b32 v{t0}, 5, v{vl}
        v_lshlrev_b32 v{t0}, 9, v{t0}
        v_add3_u32 v{vH2}, v{vX}, v{t0}, s{sPo}
        s_lshl_b32 s{sP8}, s{stt}, 2
        s_add_u32 s{sP8}, s{sP8}, s{sC}
        s_lshl_b32 s{sP8}, s{sP8}, 19
        s_add_u32 s{sP8}, s{sP8}, {PB_OFF}
        s_lshl_b32 s{sPo}, s{sk}, 16
        s_add_u32 s{sPo}, s{sPo}, s{sM}
        s_add_u32 s{sPo}, s{sPo}, s{sP8}
        s_lshl_b32 m0, s{sw}, 17
        s_add_u32 s{sP8}, s{sP8}, m0
        s_lshl_b32 m0, s{sk}, 10
        s_add_u32 s{sP8}, s{sP8}, m0
        v_min_u32 v{vL0}, 1, v{vl}
        v_lshlrev_b32 v{vL0}, 30, v{vL0}
        v_and_b32 v{vPa}, 7, v{vl}
        v_lshlrev_b32 v{vPa}, 7, v{vPa}
        """)
        a(f"""
        v_bfe_u32 v{t0}, v{vl}, 4, 1
        v_lshlrev_b32 v{t0}, 1, v{t0}
        v_and_b32 v{t1}, 3, v{vl}
        v_xor_b32 v{t0}, v{t0}, v{t1}
        v_lshlrev_b32 v{t0}, 4, v{t0}
        s_mul_i32 m0, s{sC}, 288
        v_add_u32 v{t0}, m0, v{t0}
        v_lshrrev_b32 v{t1}, 2, v{vl}
        s_lshl_b32 m0, s{sw}, 4
        v_add_u32 v{t2}, m0, v{t1}
        v_mul_u32_u24 v{vD0}, 1152, v{t2}
        v_add_u32 v{vD0}, v{vD0}, v{t0}
        v_and_b32 v{t1}, 39, v{t2}
        v_bfe_u32 v{t3}, v{t2}, 3, 1
        v_lshl_add_u32 v{t1}, v{t3}, 4, v{t1}
        v_bfe_u32 v{t3}, v{t2}, 4, 1
        v_lshl_add_u32 v{t1}, v{t3}, 3, v{t1}
        v_mul_u32_u24 v{vD1}, 1152, v{t1}
        v_add_u32 v{vD1}, v{vD1}, v{t0}
        """)
    tok_ld = f"buffer_load_dwordx2 v[{vTok}:{vTok+1}], off, s[{sDbg}:{sDbg+3}], 0{sc}"
    tok_t = [f"v_cmp_eq_u32 vcc, 0, v{vTok}"]
    def flag_st(st, so, tag=None):
        st.vmem(f"buffer_store_dwordx2 v[{vTok}:{vTok+1}], v{vL0}, {WS}, {so} offen{sc}", tag)
    def poll_ld(so): return f"buffer_load_dwordx2 v[{vPl}:{vPl+1}], v{vPa}, {WS}, {so} offen{sc}"
    poll_t = [f"v_cmp_ne_u64 vcc, v[{vPl}:{vPl+1}], v[{vTok}:{vTok+1}]"]

    a("s_waitcnt lgkmcnt(0)")
    st = St(a)
    def ln_hook():
        setup(); setup2(); a(f"s_mov_b32 s{sCh}, 1024")
    ln_wave(st, 2, sX, sWS, None, vl, LNB, sc=sc, sT=80, after_ld=ln_hook)
    a(tok_ld)
    a(f"s_lshl_b32 s80, s2, 7"); a(f"s_add_u32 s80, s80, {F1}")
    a("s_waitcnt vmcnt(0)")
    run(check([tok_ld], tok_t))
    flag_st(st, "s80")
    a("s_branch L_join")
    a("L_kg:")
    for i, k in enumerate(("lar", "aim", "cre", "cim", "ldt", "dsk")):
        a(f"s_load_dwordx2 s[{52+4*i}:{53+4*i}], s[0:1], {OFF[k]}")
    a(f"s_memrealtime s[{sPo}:{sPo+1}]")
    a(f"""
    s_lshl_b32 s{sCh}, s2, 1
    s_lshr_b32 s80, s{sw}, 1
    s_add_u32 s{sCh}, s{sCh}, s80
    s_add_u32 s80, s2, 512
    s_cmp_eq_u32 s{sw}, 2
    s_cselect_b32 s{sCh}, s80, s{sCh}
    """)
    for i in range(6):
        a(f"s_mov_b32 s{54+4*i}, {576 * 256 if i < 4 else 1152}"); a(f"s_mov_b32 s{55+4*i}, 0x00020000")
    a(f"""
    s_waitcnt lgkmcnt(0)
    s_cmp_lg_u32 s{sCh}, 0
    s_cbranch_scc1 L_notok
    s_or_b32 s{sPo}, s{sPo}, 1
    v_mov_b32 v{vTok}, s{sPo}
    v_mov_b32 v{vTok+1}, s{sPo+1}
    buffer_store_dwordx2 v[{vTok}:{vTok+1}], off, s[{sDbg}:{sDbg+3}], 0{sc}
    L_notok:
    """)
    st = St(a)
    def dma_stage(p, ks, v=None, dm=0):
        slot = (ks + (18 if p else 0)) % RING
        if v is None: v = vW1 if p else vW0
        return [f"s_add_u32 m0, s{sM}, {slot*8192+dm}",
                lambda: st.vmem(f"buffer_load_dwordx4 v{v}, s[{sWg}:{sWg+3}], s{sKS+ks} offen lds", ("w", p, ks)),
                lambda: st.vmem(f"buffer_load_dwordx4 v{v}, s[{sWu}:{sWu+3}], s{sKS+ks} offen offset:1024 lds", ("w", p, ks))]
    def dma_p2(nn, v=None, dm=0):
        return [f"s_add_u32 m0, s{sM1}, {P2B + nn*4096+dm}",
                lambda: st.vmem(f"buffer_load_dwordx4 v{v or vW2}, s[{sW2}:{sW2+3}], s{sKS+2*nn} offen lds", ("w2", nn))]
    def kg_hook():
        setup()
        for k in range(RING - 1): run_dma(dma_stage(0, k))
        for k in range(9): run_dma(dma_p2(k))
        keep = list(st.vm)
        a(f"s_cmp_lg_u32 s{sw}, 2"); a("s_cbranch_scc1 L_now0")
        a(f"v_subrev_u32 v{t0}, {16*9216}, v{vW0}"); a(f"v_subrev_u32 v{t1}, 294912, v{vW2}")
        for k in range(RING - 1): run_dma(dma_stage(0, k, t0, -4096))
        for k in range(9): run_dma(dma_p2(k, t1, -2048))
        nw2 = len(st.vm) - 6
        a("L_now0:")
        st.vm = keep
        setup2()
        a(f"s_mul_i32 s{sW2}, s{sw}, {CV_LDS}")
        a(f"s_add_u32 s{sW2+1}, s{sW2}, {CVB - CV_LDS + CV_KR}")
        a(f"s_add_u32 s{sW2}, s{sW2}, {CVB - CV_LDS + CV_KR - KG_LDS}")
        a(f"s_cmp_ge_u32 s{sCh}, 576"); a("s_cbranch_scc1 L_kgdone")
        a(f"s_waitcnt vmcnt({nw2})")
        a(f"s_cmp_eq_u32 s{sw}, 2"); a("s_cbranch_scc1 L_par")
        st.wait(vm="kg5")
        a("L_par:")
    assert LNB + 8 * 1344 <= CVB + CV_KR - KG_LDS
    top = kgen_wave(st, sCh, 52, None, vl, sW2, sT=80, sKL=sW2 + 1, after_ld=kg_hook)
    assert top <= 232, top
    a("L_kgdone:")
    a(tok_ld)
    a("L_join:")
    stamp(a, 1)
    a(f"s_lshl_b32 s80, s{sg}, 10"); a(f"s_add_u32 s80, s80, {F1}")
    a(poll_ld("s80"))
    a("s_waitcnt vmcnt(0) lgkmcnt(0)")
    run(check([tok_ld], tok_t))
    run(check([poll_ld("s80")], poll_t))

    st = St(a)
    def xreg(ks, t):
        return f"a[{16*ks+4*t}:{16*ks+4*t+3}]" if ks < 16 else f"v[{XV+16*(ks-16)+4*t}:{XV+16*(ks-16)+4*t+3}]"
    def xload(ks):
        fs = []
        for t in range(4):
            fs.append(lambda t=t: st.vmem(f"buffer_load_dwordx4 {xreg(ks,t)}, v{vX4 if ks & 1 else vX}, {WS}, s{sXo} offen offset:{t*1024}{sc}", ("x", ks, t)))
        if ks & 1: fs.append(f"s_add_u32 s{sXo}, s{sXo}, 8192")
        return fs
    for k in range(XD): run(xload(k))
    a("s_barrier")
    if STAMP[0]:
        stamp(a, 2); a("s_waitcnt lgkmcnt(0)")
    G = G2(st)
    frags = []
    for ks in range(18):
        for i in range(8): frags.append((0, ks, i))
    for ks in range(18):
        for i in range(2): frags.append((2, ks, i))
    for ks in range(18):
        for i in range(8): frags.append((1, ks, i))
    def rd(j):
        p, ks, i = frags[j]; w = WR + 4 * (j % NW)
        if p == 2:
            ad = vTR2; off = ks * 2048 + i * 1024; hs = 256
        else:
            slot = (ks + (18 if p else 0)) % RING
            ad = vTR + (i >> 1); off = slot * 8192 + (i & 1) * 1024; hs = 512
        return [lambda: st.lds(f"ds_read_b64_tr_b16 v[{w}:{w+1}], v{ad} offset:{off}", ("f", j)),
                lambda: st.lds(f"ds_read_b64_tr_b16 v[{w+2}:{w+3}], v{ad} offset:{off+hs}", ("f", j))]
    def accreg(p, i, t):
        if p == 2: return ACC2 + 16 * i + 4 * t
        return ACC + 16 * ((i >> 1) + 4 * (i & 1)) + 4 * t
    D = NW - 1
    first = {}
    for j, (p, ks, i) in enumerate(frags):
        w = WR + 4 * (j % NW)
        for t in range(4):
            c = accreg(p, i, t)
            src = "0" if ks == 0 else f"v[{c}:{c+3}]"
            m = G.mfma(f"v_mfma_f32_16x16x32_bf16 v[{c}:{c+3}], v[{w}:{w+3}], {xreg(ks,t)}, {src}")
            if t == 0:
                first.setdefault((p, ks), m)
                if p == 0 and i == 0:
                    G.add_pre(m, lambda j=j, ks=ks: st.wait(vm=("x", ks, 3 if ks else 0), lg=("f", j)))
                else:
                    G.add_pre(m, lambda j=j: st.wait(lg=("f", j)))
            elif p == 0 and i == 0 and ks == 0:
                G.add_pre(m, lambda t=t: st.wait(vm=("x", 0, t)))
    def bar(p, ks):
        def f():
            if p != 2 and not (p == 0 and ks < RING - 1): st.wait(vm=("w", p, ks))
            a("s_barrier")
        return f
    for j in range(D): run(rd(j))
    barpos = {}
    for j in range(len(frags) - D):
        p, ks, i = frags[j + D]
        if i == 0 and (p != 2 or ks == 0):
            G.add_pre(4 * j, bar(p, ks), cost=2)
            barpos[(p, ks)] = 4 * j
        r = rd(j + D)
        G.add_gap(4 * j, r[0]); G.add_gap(4 * j + 1, r[1])
    for ks in range(18):
        nx = ks + RING - 1
        mb = barpos[(0, ks + 1)] if ks < 17 else barpos[(2, 0)]
        G.place_x(mb + 2, dma_stage(0, nx) if nx < 18 else dma_stage(1, nx - 18))
    for ks in range(18):
        nx = ks + RING - 1
        if nx < 18: G.place_x(barpos[(1, ks + 1)] + 2, dma_stage(1, nx))
    m = 2
    for ks in range(XD, 18):
        for f in xload(ks):
            if isinstance(f, str): G.place(last + 1, [f])
            else:
                last = G.place(m, [f]); m += xstep
                assert last + 2 < m
        assert last < first[(0, ks)] - 40
    mx = last + 2
    XTd = ACC2; vA = ACC2 + 16; vB = ACC2 + 17; vZ = ACC2 + 18; Z4 = ACC2 + 20; PO = ACC2 + 24
    fs = f"""s_lshl_b32 s12, s{sC}, 3
    s_add_u32 s12, s12, s{sk}
    s_mul_i32 s13, s{sg}, 18
    s_add_u32 s13, s13, s12
    s_lshl_b32 s13, s13, 12
    s_mul_i32 s14, s12, {32*XT_STR}
    s_add_u32 s14, s14, {XT_OFF+96}
    s_lshl_b32 s15, s12, 5
    s_add_u32 s15, s15, s{sg}
    s_lshl_b32 s15, s15, 7
    s_add_u32 s15, s15, {F2}
    s_cmp_lt_u32 s12, 18\\ns_cselect_b32 s12, 0, {OOB}
    s_add_u32 s13, s13, s12
    s_add_u32 s14, s14, s12
    s_add_u32 s15, s15, s12
    s_cmp_eq_u32 s{sg}, 0\\ns_cselect_b32 s12, s14, {OOB}
    s_lshl_b32 s81, s{sg}, 7
    s_add_u32 s14, s14, s81
    v_lshrrev_b32 v{t0}, 5, v{vl}
    v_bfe_u32 v{t1}, v{vl}, 1, 1
    v_lshlrev_b32 v{t1}, 8, v{t1}
    v_lshl_add_u32 v{vA}, v{t0}, 10, v{t1}
    v_bfe_u32 v{t0}, v{vl}, 4, 1
    v_lshl_add_u32 v{vA}, v{t0}, 7, v{vA}
    v_bfe_u32 v{t0}, v{vl}, 2, 2
    v_lshl_add_u32 v{vA}, v{t0}, 4, v{vA}
    v_and_b32 v{t0}, 1, v{vl}
    v_lshl_add_u32 v{vA}, v{t0}, 3, v{vA}
    s_lshl_b32 s81, s{sw}, 12
    s_add_u32 s81, s81, {CVB}
    v_add_u32 v{vA}, s81, v{vA}
    v_lshrrev_b32 v{t1}, 1, v{vl}
    v_mul_u32_u24 v{t1}, {XT_STR}, v{t1}
    v_lshl_add_u32 v{vZ}, v{t0}, 4, v{t1}
    v_and_b32 v{t0}, 15, v{vl}
    v_mul_u32_u24 v{t0}, {XT_STR}, v{t0}
    v_and_b32 v{t1}, 48, v{vl}
    v_add_u32 v{vB}, v{t0}, v{t1}""".split("\n")
    fs = [f.strip().replace("\\n", "\n") for f in fs]
    fs += [f"v_mov_b32 v{Z4+i}, 0" for i in range(4)] + [f"v_mov_b32 v{PO+i}, -1" for i in range(4)]
    last = G.place(10, fs, cap=2)
    last = G.place_x(max(last + 1, mx - 60), ["s_mov_b32 m0, s81"] +
              [lambda t=t: st.vmem(f"buffer_load_dwordx4 v{vX}, {WS}, s13 offen offset:{t*1024}{sc} lds", "xtl") for t in range(4)])
    def pst(src, so, off, tag):
        return lambda: st.vmem(f"buffer_store_dwordx4 v[{src}:{src+3}], v{vX}, {WS}, {so} offen offset:{off}{sc}", tag)
    m = mx
    for s in range(7, 0, -1):
        G.place(m, [f"s_xor_b32 s82, s{sPo}, {(s<<16)|(s<<13)}", pst(PO, "s82", 0, "po"), pst(PO, "s82", 1024, "po")], step=4); m += 16
    G.place(m, [f"s_add_u32 s82, s{sP8}, 65536", pst(PO, f"s{sP8}", 0, "po"), pst(PO, "s82", 0, "po")], step=4); m += 16
    fs = [lambda: st.wait(vm="xtl")]
    for hf in range(2):
        for th in range(2):
            for r in range(2):
                d = XTd + 8 * hf + 4 * th + 2 * r
                fs.append(lambda d=d, o=th*2048+hf*512+r*64: st.lds(f"ds_read_b64_tr_b16 v[{d}:{d+1}], v{vA} offset:{o}", "xtr"))
    last = G.place(m, fs, step=1)
    fs = [lambda: st.wait(lg="xtr")]
    for hf in range(2):
        if hf: fs.append(f"s_add_u32 s14, s14, {16*XT_STR}")
        for th in range(2):
            d = XTd + 8 * hf + 4 * th
            fs.append(lambda d=d, th=th: st.vmem(f"buffer_store_dwordx4 v[{d}:{d+3}], v{vB}, {WS}, s14 offen offset:{32+th*64}{sc}", "xts"))
    fs.append(lambda: st.vmem(f"buffer_store_dwordx4 v[{Z4}:{Z4+3}], v{vZ}, {WS}, s12 offen{sc}", "xts"))
    last = G.place(last + 8, fs, step=3)
    assert last < first[(2, 0)] - 4, (last, first[(2, 0)])
    tcount = [0]
    def hst(src, p, kk, t):
        return lambda: st.vmem(f"buffer_store_dwordx4 v[{src}:{src+3}], v{vX4 if kk else vX}, {WS}, s{sHo+8*p} offen offset:{t*1024}{sc}", ("h", p))
    def epi_main(p, kks=(0, 1)):
        fs = []
        for kk in kks:
            for t in range(4):
                if p == 0:
                    tmp = TMP + 4 * (tcount[0] % 4); tcount[0] += 1
                else: tmp = XV + 16 * kk + 4 * t
                for hh in range(2):
                    g = ACC + 16 * (2 * kk + hh) + 4 * t; u = g + 64
                    for e in range(4): fs.append(f"v_mul_f32 v{g+e}, v{g+e}, v{u+e}")
                    fs.append(f"v_cvt_pk_bf16_f32 v{tmp+2*hh}, v{g}, v{g+1}")
                    fs.append(f"v_cvt_pk_bf16_f32 v{tmp+2*hh+1}, v{g+2}, v{g+3}")
                fs.append(hst(tmp, p, kk, t))
        return fs
    def epi2():
        fs = []
        for tp in range(2):
            tmp = TMP + 4 * (tcount[0] % 4); tcount[0] += 1
            for hh in range(2):
                g = ACC2 + 4 * (2 * tp + hh); u = g + 16
                for e in range(4): fs.append(f"v_mul_f32 v{g+e}, v{g+e}, v{u+e}")
                fs.append(f"v_cvt_pk_bf16_f32 v{tmp+2*hh}, v{g}, v{g+1}")
                fs.append(f"v_cvt_pk_bf16_f32 v{tmp+2*hh+1}, v{g+2}, v{g+3}")
            fs.append("s_nop 1")
            fs.append(f"v_permlane32_swap_b32 v{tmp}, v{tmp+2}")
            fs.append(f"v_permlane32_swap_b32 v{tmp+1}, v{tmp+3}")
            fs.append("s_nop 0")
            fs.append(lambda tmp=tmp, tp=tp: st.vmem(f"buffer_store_dwordx4 v[{tmp}:{tmp+3}], v{vH2}, {WS}, s{sHo+4} offen offset:{tp*2048}{sc}", ("h", 2)))
        return fs
    last = G.place(first[(2, 0)] + 8, epi_main(0))
    assert last < first[(1, 0)] - 4, (last, first[(1, 0)])
    G.place(last + 1, [lambda: st.wait(vm="xts"), lambda: flag_st(st, "s15")])
    last = G.place(first[(1, 0)] + 8, epi2())
    f1 = lambda ks: first[(1, ks)]
    def wd_dma(G, m, region, colexpr, tag, step=6):
        fs = colexpr + [f"v_add_u32 v{vW0}, s80, v{vD0}", f"v_add_u32 v{vW2}, s80, v{vD1}"]
        if G is None: run(fs)
        else: m = G.place(m, fs) + 1
        for p in range(9):
            fs = [f"s_add_u32 m0, s{sM1}, {region + p*4096}",
                  lambda p=p: st.vmem(f"buffer_load_dwordx4 v{vW2 if p == 4 else vW0}, s[{sWd}:{sWd+3}], s{sWo+p} offen lds", tag)]
            if G is None: run_dma(fs)
            else: m = max(G.place_x(m, fs) + 1, m + step)
        return m
    def paircol(i): return [f"s_xor_b32 s80, s{sk}, {2*i}", "s_lshr_b32 s80, s80, 1", "s_lshl_b32 s80, s80, 6"]
    last = wd_dma(G, max(last + 1, f1(1) + 4), P2B, ["s_mov_b32 s80, 256"], "wd8")
    a_off = [f"s_lshl_b32 s12, s2, 2", f"s_add_u32 s12, s12, s{sw}", "s_lshl_b32 s12, s12, 7", f"s_add_u32 s13, s12, {FB}", f"s_add_u32 s12, s12, {FA}"]
    last = G.place(max(last, f1(P.get("fa", 4))), a_off + [lambda: st.wait(vm=("h", 2)), lambda: flag_st(st, "s12")])
    fs = f"""s_lshr_b32 s14, s2, 4
    s_lshr_b32 s15, s2, 5
    s_add_u32 s15, s15, 16
    s_cmp_lt_u32 s2, 64\\ns_cselect_b32 s15, s15, s14
    s_sub_u32 s15, s15, s14
    s_lshl_b32 s15, s15, 12
    s_lshl_b32 s14, s14, 12
    s_add_u32 s14, s14, {F2}
    v_lshrrev_b32 v{t0}, 5, v{vl}
    v_mul_lo_u32 v{t0}, v{t0}, s15
    v_and_b32 v{t1}, 31, v{vl}
    v_lshl_add_u32 v{vPa}, v{t1}, 7, v{t0}""".split("\n")
    fs = [f.strip().replace("\\n", "\n") for f in fs]
    last = G.place(last + 1, fs + [lambda: st.vmem(poll_ld("s14"), "p2")])
    fs = f"""s_mul_i32 s15, s2, {2*XT_STR}
    s_lshl_b32 s81, s{sw}, 1
    s_add_u32 s81, s81, {XT_OFF+128}
    s_mul_i32 s82, s2, {XT_STR}
    s_add_u32 s82, s82, {512*XT_STR}
    s_cmp_lt_u32 s2, 64\\ns_cselect_b32 s82, s82, {OOB}
    s_add_u32 s82, s82, s81
    s_add_u32 s15, s15, s81
    s_mul_i32 s81, s{sw}, {CV_XS}
    s_mul_i32 s{sXo}, s{sCh}, {XT_STR}
    s_add_u32 s{sXo}, s{sXo}, {XT_OFF}
    v_and_b32 v{t1}, 6, v{vl}
    v_and_b32 v{t0}, 1, v{vl}
    v_lshl_add_u32 v{t1}, v{t0}, 4, v{t1}""".split("\n")
    fs = [f.strip().replace("\\n", "\n") for f in fs]
    last = G.place(last + 1, fs)
    last = G.place(max(last + 1, f1(P.get("p2c", 7))), [lambda: st.wait(vm="p2")] + check([poll_ld("s14")], poll_t))
    last = G.place(last + 1, [lambda: st.vmem(f"buffer_load_dwordx4 v[{HD}:{HD+3}], v{t1}, {WS}, s{sXo} offen offset:96{sc}", "cv")])
    for b, so in ((0, "s15"), (1, "s82"), (2, "s15")):
        if b == 2: last = G.place(last + 1, [f"s_add_u32 s15, s15, {XT_STR}"])
        last = G.place_x(last + 1, [f"s_add_u32 m0, s81, {CVB + b*CV_LDS + 32}"] +
                 [lambda i=i, so=so: st.vmem(f"buffer_load_dwordx4 v{vX}, {WS}, {so} offen offset:{i*1024}{sc} lds", "cv") for i in range(4)], step=3)
    fs = f"""v_and_b32 v{t0}, 7, v{vl}
    s_and_b32 s14, s2, 0xf8
    v_add_u32 v{t0}, s14, v{t0}
    v_and_b32 v{t1}, 3, v{vl}
    s_and_b32 s14, s2, 0x3f
    v_lshl_add_u32 v{t1}, v{t1}, 6, s14
    s_lshr_b32 s14, s{sk}, 1
    v_lshl_add_u32 v{t2}, v{t0}, 2, s14
    v_lshl_add_u32 v{t0}, v{t0}, 2, s{sw}
    v_lshl_add_u32 v{t1}, v{t1}, 2, s{sw}
    s_mov_b64 vcc, 0xff00
    v_cndmask_b32 v{t0}, v{t0}, v{t2}, vcc
    s_mov_b64 vcc, 0xffff
    v_cndmask_b32 v{t0}, v{t1}, v{t0}, vcc
    v_lshlrev_b32 v{vPa}, 7, v{t0}
    v_lshlrev_b32 v{t3}, 7, v{t1}
    s_mov_b32 s14, {FA}""".split("\n")
    fs = [f.strip() for f in fs]
    last = G.place(last + 1, fs + [lambda: st.vmem(poll_ld("s14"), "pa")])
    last = G.place(max(last + 50, f1(P.get("pac", 10))), [lambda: st.wait(vm="pa")] + check([poll_ld("s14")], poll_t) +
                   [f"v_mov_b32 v{vPa}, v{t3}", f"s_mov_b32 s14, {FB}"])
    def hload(s):
        return [lambda t=t: st.vmem(f"buffer_load_dwordx4 {xreg(s,t)}, v{vX4 if s & 1 else vX}, {WS}, s{sHo+(s>>1)} offen offset:{t*1024}{sc}", ("hl", s)) for t in range(4)]
    assert last >= f1(10)
    last = G.place(last + 1, sum([hload(s) for s in range(10)], []), step=P.get("hstep", 4))
    print("h loads end at", last, "of", len(G.mf), file=sys.stderr)
    if STAMP[0]:
        def mk(i):
            def f():
                st.wait(lg="all"); stamp(a, i); a("s_waitcnt lgkmcnt(0)")
            return f
        G.add_pre(first[(2, 0)], mk(3))
    G.place(f1(17) + 16 + 8, epi_main(1, (0,)))
    G.emit()
    a("s_nop 3")
    run(epi_main(1, (1,)))
    if STAMP[0]: mk(4)()
    st.wait(vm="cv", lg="all")
    a("s_barrier")
    wd_dma(None, 0, 0, paircol(3), "wdA")
    a(f"s_cmp_ge_u32 s{sCh}, 576"); a("s_cbranch_scc1 L_idle")
    late = sum([hload(s) for s in range(10, 16)], [])
    snap = (list(st.vm), st.vm_done, list(st.lg), st.lg_done)
    vA, vB, vY = TMP, TMP + 1, TMP + 2
    CA = 0; AF = 32; BF = 96
    a(f"""
    s_mul_i32 s80, s{sw}, {CV_LDS}
    s_add_u32 s80, s80, {CVB - CV_LDS}
    v_bfe_u32 v{t0}, v{vl}, 1, 2
    v_mul_u32_u24 v{t0}, {CV_XS}, v{t0}
    v_and_b32 v{t1}, 1, v{vl}
    v_lshl_add_u32 v{t0}, v{t1}, 4, v{t0}
    v_add_u32 v{t0}, s80, v{t0}
    """)
    st.lds(f"ds_write_b128 v{t0}, v[{HD}:{HD+3}]", "cvw")
    a(f"""
    v_and_b32 v{t1}, 15, v{vl}
    v_lshrrev_b32 v{t2}, 4, v{vl}
    v_lshlrev_b32 v{vY}, 5, v{t1}
    v_lshlrev_b32 v{vB}, 4, v{t2}
    v_sub_u32 v{vB}, v{vB}, v{vY}
    v_lshl_add_u32 v{vY}, v{t2}, 3, v{vY}
    s_add_u32 s81, s80, {CV_KR+480}
    v_add_u32 v{vB}, s81, v{vB}
    v_add_u32 v{t1}, 1, v{t1}
    v_and_b32 v{vA}, 3, v{t1}
    v_mul_u32_u24 v{vA}, {CV_XS}, v{vA}
    v_lshrrev_b32 v{t1}, 2, v{t1}
    v_lshl_add_u32 v{vA}, v{t1}, 3, v{vA}
    v_lshl_add_u32 v{vA}, v{t2}, 4, v{vA}
    v_add_u32 v{vA}, s80, v{vA}
    s_lshl_b32 s80, s{sCh}, 12
    s_add_u32 s80, s80, {YT_OFF}
    """)
    def rdA(rho, S):
        r = AF + 32 * (rho & 1) + 4 * S; off = 64 * (8 * S + rho)
        return [lambda: st.lds(f"ds_read_b64 v[{r}:{r+1}], v{vA} offset:{off}", ("A", rho, S)),
                lambda: st.lds(f"ds_read_b64 v[{r+2}:{r+3}], v{vA} offset:{off+8}", ("A", rho, S))]
    def rdB(rho, u):
        r = BF + 32 * (rho & 1) + 4 * u; off = 64 * (rho - 8 * u + 56)
        return [lambda: st.lds(f"ds_read_b128 v[{r}:{r+3}], v{vB} offset:{off}", ("B", rho, u))]
    pairs = sorted([(S, u) for S in range(8) for u in range(8 - S)], key=lambda p: (max(p), p))
    def reads(rho):
        fs = []
        for i in range(8): fs += rdA(rho, i) + rdB(rho, i)
        return fs
    G = G2(st)
    seen = set()
    for rho in range(8):
        for (S, u) in pairs:
            T = S + u; c = CA + 4 * T
            src = f"v[{c}:{c+3}]" if T in seen else "0"
            seen.add(T)
            ra = AF + 32 * (rho & 1) + 4 * S; rb = BF + 32 * (rho & 1) + 4 * u
            m = G.mfma(f"v_mfma_f32_16x16x32_bf16 v[{c}:{c+3}], v[{ra}:{ra+3}], v[{rb}:{rb+3}], {src}")
            G.add_pre(m, lambda rho=rho, S=S, u=u: st.wait(lg=[("A", rho, S), ("B", rho, u)]), cost=0)
    for f in reads(0)[:12]: f()
    G.place(0, reads(0)[12:], cap=2)
    for rho in range(7):
        G.place(36 * rho + 8, reads(rho + 1), cap=1)
    pubB = [lambda: st.wait(vm=("h", 1)), lambda: flag_st(st, "s13")]
    G.place(P.get("fb", 80), pubB)
    G.place(P.get("pb", 150), [lambda: st.vmem(poll_ld("s14"), "pb")])
    last = G.place(P.get("pbc", 225), [lambda: st.wait(vm="pb")] + check([poll_ld("s14")], poll_t))
    last = G.place(last + 1, late, step=2)
    G.emit()
    a("s_nop 7")
    for T in range(8):
        c = CA + 4 * T; o = AF + 2 * T
        a(f"v_cvt_pk_bf16_f32 v{o}, v{c}, v{c+1}"); a(f"v_cvt_pk_bf16_f32 v{o+1}, v{c+2}, v{c+3}")
        st.vmem(f"buffer_store_dwordx2 v[{o}:{o+1}], v{vY}, {WS}, s80 offen offset:{T*512}{sc}", "yst")
    a(f"s_lshl_b32 s12, s{sCh}, 7"); a(f"s_add_u32 s12, s12, {F4}")
    a("s_branch L_g2")
    snap2 = (list(st.vm), st.vm_done)
    a("L_idle:")
    st.vm, st.vm_done, st.lg, st.lg_done = snap
    run(pubB); st.vmem(poll_ld("s14"), "pb"); st.wait(vm="pb"); run(check([poll_ld("s14")], poll_t)); run(late)
    a(f"s_mov_b32 s12, {OOB}")
    for T in range(8): st.vmem(f"buffer_store_dword v0, v{vX}, {WS}, s12 offen", "yst")
    assert st.vm == snap2[0] and st.vm_done == snap2[1]
    a("L_g2:")
    if STAMP[0]: mk(5)()
    AC = 0; PK = 48; SUM = 64; S8 = 80; IN = 84; IN8 = 116; XR = 132; X8 = 140; YR = 142; Y8 = 150; U = 152
    vR = TMP
    vXO = TMP + 7; vXO8 = TMP + 8; vI8 = TMP + 9; vYr = TMP + 10; vYr8 = TMP + 11; vYs = TMP + 12; vYs8 = TMP + 13
    RA, RB, RC = 0, CVB, P2B
    a(f"""
    v_lshrrev_b32 v{t0}, 2, v{vl}
    v_and_b32 v{t1}, 3, v{vl}
    v_lshlrev_b32 v{t1}, 3, v{t1}
    v_lshl_add_u32 v{t0}, v{t0}, 6, v{t1}
    v_bfe_u32 v{t1}, v{vl}, 4, 1
    v_lshl_add_u32 v{t0}, v{t1}, 5, v{t0}
    v_add_u32 v{vR+6}, {RC}, v{t0}
    s_and_b32 s80, s{sk}, 1
    s_lshl_b32 s80, s80, 5
    v_xor_b32 v{vR+1}, s80, v{t0}
    v_xor_b32 v{vR}, 32, v{vR+1}
    """)
    st.wait(vm="wdA", lg="all")
    a("s_barrier")
    G = G2(st)
    order0 = list(range(10)) + [16, 17] + list(range(10, 16))
    fr = []
    for s_ in order0:
        fr.append((8, s_, vR + 6, AC)); fr.append((7, s_, vR, AC + 16))
    areg = {6: vR + 1, 5: vR + 2, 4: vR + 3, 3: vR + 4, 2: vR + 5, 1: vR, 0: vR + 1}
    accof = {8: AC, 7: AC + 16}
    for i, s in enumerate(range(6, -1, -1)):
        accof[s] = AC + 16 * ((i + 2) % 3)
        for s_ in range(18): fr.append((s, s_, areg[s], accof[s]))
    def rd2(j):
        s, s_, ad, _ = fr[j]; w = WR + 4 * (j % NW)
        return [lambda: st.lds(f"ds_read_b64_tr_b16 v[{w}:{w+1}], v{ad} offset:{s_*2048}", ("g", j)),
                lambda: st.lds(f"ds_read_b64_tr_b16 v[{w+2}:{w+3}], v{ad} offset:{s_*2048+1024}", ("g", j))]
    started = set(); T_ = {}
    for j, (s, s_, ad, acc) in enumerate(fr):
        w = WR + 4 * (j % NW)
        for t in range(4):
            c = acc + 4 * t
            src = f"v[{c}:{c+3}]" if s in started else "0"
            m = G.mfma(f"v_mfma_f32_16x16x32_bf16 v[{c}:{c+3}], v[{w}:{w+3}], {xreg(s_,t)}, {src}")
            if t == 0: G.add_pre(m, lambda j=j, s=s, s_=s_: st.wait(vm=("hl", s_) if (s == 8 and s_ < 16) else None, lg=("g", j)))
        started.add(s); T_[s] = m + 1
    T_[8] = T_[7]
    for j in range(D): run(rd2(j))
    def bar2(tag):
        def f():
            if tag: st.wait(vm=tag)
            a("s_barrier")
        return f
    for j in range(len(fr) - D):
        s, s_, _, _ = fr[j + D]
        if s_ == 0 and s in (5, 3, 1): G.add_pre(4 * j, bar2({5: "wdB", 3: "wdC", 1: "wdD"}[s]), cost=2)
        r = rd2(j + D)
        G.add_gap(4 * j, r[0]); G.add_gap(4 * j + 1, r[1])
    G.add_pre(T_[7] + 2, bar2(None)); G.add_pre(T_[6] + 2, bar2(None))
    last = wd_dma(G, 1, RB, paircol(2), "wdB")
    fs = f"""v_add_u32 v{vR+2}, {RB}, v{vR}
    v_add_u32 v{vR+3}, {RB}, v{vR+1}
    v_add_u32 v{vR+4}, {RC}, v{vR}
    v_add_u32 v{vR+5}, {RC}, v{vR+1}
    v_and_b32 v{t0}, 15, v{vl}
    v_mul_u32_u24 v{vXO}, 1152, v{t0}
    v_lshrrev_b32 v{t1}, 4, v{vl}
    v_lshl_add_u32 v{vXO}, v{t1}, 3, v{vXO}
    s_lshr_b32 s13, s{sw}, 1
    s_lshl_b32 s13, s13, 30
    v_add_u32 v{vXO8}, s13, v{vXO}
    s_and_b32 s15, s{sw}, 1
    s_lshl_b32 s81, s15, 3
    s_add_u32 s13, s13, s81
    v_add_u32 v{vI8}, s13, v{vX}
    s_mul_i32 s13, s{sw}, 3072
    s_add_u32 s13, s13, {YB}
    v_lshrrev_b32 v{t0}, 2, v{vl}
    v_and_b32 v{t1}, 3, v{vl}
    v_lshl_add_u32 v{t2}, v{t1}, 3, s13
    v_lshl_add_u32 v{vYr}, v{t0}, 7, v{t2}
    v_lshl_add_u32 v{vYr8}, v{t0}, 6, v{t2}
    s_lshl_b32 s81, s15, 5
    v_add_u32 v{vYr8}, s81, v{vYr8}
    v_lshlrev_b32 v{t1}, 4, v{t1}
    v_lshl_add_u32 v{vYs8}, v{t0}, 12, v{t1}
    v_lshrrev_b32 v{t0}, 3, v{vl}
    v_and_b32 v{t1}, 7, v{vl}
    v_lshlrev_b32 v{t1}, 4, v{t1}
    v_lshl_add_u32 v{vYs}, v{t0}, 12, v{t1}
    s_mul_i32 s76, s{sC}, 144
    s_lshl_b32 s81, s{sk}, 4
    s_add_u32 s77, s76, 128
    s_add_u32 s76, s76, s81
    s_sub_u32 s81, s77, s76
    s_sub_u32 s81, s81, 16
    v_bfe_u32 v{t0}, v{vl}, 4, 1
    v_mul_lo_u32 v{t0}, v{t0}, s81
    v_and_b32 v{t1}, 31, v{vl}
    v_add_lshl_u32 v{vPa}, v{t0}, v{t1}, 7
    s_lshl_b32 s14, s76, 7
    s_add_u32 s14, s14, {F4}
    s_lshl_b32 s78, s{stt}, 3
    s_add_u32 s78, s78, s{sk}
    s_lshl_b32 s40, s76, 12
    s_lshl_b32 s81, s{sg}, 7
    s_add_u32 s40, s40, s81
    s_add_u32 s40, s40, {YT_OFF}
    s_add_u32 s41, s40, {8*4096 - 1024}
    s_lshl_b32 s42, s77, 12
    s_lshl_b32 s81, s78, 6
    s_add_u32 s42, s42, s81
    s_add_u32 s42, s42, {YT_OFF - 2048}
    s_mul_i32 s44, s{sg}, {64*1152}
    s_lshl_b32 s81, s76, 1
    s_add_u32 s44, s44, s81
    s_add_u32 s45, s44, {16*1152}
    s_add_u32 s46, s44, {32*1152}
    s_add_u32 s47, s44, {48*1152}
    s_lshl_b32 s48, s78, 1
    s_add_u32 s48, s48, s15
    s_mul_i32 s48, s48, {16*1152}
    s_lshl_b32 s81, s77, 1
    s_add_u32 s48, s48, s81
    s_and_b32 s49, s{sPo}, 0xffff0000
    s_add_u32 s50, s49, 4096
    s_mov_b32 s51, 0xffff0000""".split("\n")
    last = G.place(6, [f.strip() for f in fs])
    last = G.place(max(last + 1, P.get("f4", 100)), [lambda: st.wait(vm="yst"), lambda: flag_st(st, "s12")])
    assert last < T_[7]
    pk = [0]
    def epi(s):
        fs = []; acc = accof[s]
        if s == 8: fs.append(f"s_add_u32 s82, s{sP8}, 65536")
        else: fs.append(f"s_xor_b32 s82, s{sPo}, {(s<<16)|(s<<13)}")
        for h in range(2):
            o = PK + 4 * (pk[0] % 4); pk[0] += 1
            for i in range(4): fs.append(f"v_cvt_pk_bf16_f32 v{o+i}, v{acc+8*h+2*i}, v{acc+8*h+2*i+1}")
            fs.append(f"v_min_u32 v{o}, -2, v{o}")
            if s == 8:
                fs.append(f"v_min_u32 v{o+2}, -2, v{o+2}")
                fs.append(pst(o, "s82" if h else f"s{sP8}", 0, ("ps", s)))
            else: fs.append(pst(o, "s82", 1024 * h, ("ps", s)))
        return fs
    def inreg(s): return IN + 8 * (s % 4)
    def pld(s): return [f"buffer_load_dwordx4 v[{inreg(s)+4*h}:{inreg(s)+4*h+3}], v{vX}, {WS}, s{52+(s%4)} offen offset:{1024*h}{sc}" for h in range(2)]
    def pload(s): return [f"s_xor_b32 s{52+(s%4)}, s{sPo}, {s<<13}"] + [lambda l=l: st.vmem(l, ("pl", s)) for l in pld(s)]
    uc = [0]
    def addpk(dst, src, n_, init=False):
        fs = []
        for i in range(n_):
            if init:
                fs += [f"v_lshlrev_b32 v{dst+2*i}, 16, v{src+i}", f"v_and_b32 v{dst+2*i+1}, s51, v{src+i}"]
            else:
                u = U + 2 * (uc[0] % 4); uc[0] += 1
                fs += [f"v_lshlrev_b32 v{u}, 16, v{src+i}", f"v_and_b32 v{u+1}, s51, v{src+i}",
                       f"v_add_f32 v{dst+2*i}, v{dst+2*i}, v{u}", f"v_add_f32 v{dst+2*i+1}, v{dst+2*i+1}, v{u+1}"]
        return fs
    def padd(s):
        r = inreg(s)
        return [lambda: st.wait(vm=("pl", s))] + check(pld(s), [f"v_max_u32 v{t0}, v{r}, v{r+4}", f"v_cmp_eq_u32 vcc, -1, v{t0}"]) + addpk(SUM, r, 8)
    ld8 = [f"buffer_load_dwordx2 v[{IN8+2*i}:{IN8+2*i+1}], v{vI8}, {WS}, s{49+(i>>2)} offen offset:{1024*(i&3)}{sc}" for i in range(8)]
    t8 = [f"v_max3_u32 v{t0}, v{IN8}, v{IN8+2}, v{IN8+4}", f"v_max3_u32 v{t1}, v{IN8+6}, v{IN8+8}, v{IN8+10}",
          f"v_max3_u32 v{t0}, v{t0}, v{IN8+12}, v{IN8+14}", f"v_max_u32 v{t0}, v{t0}, v{t1}", f"v_cmp_eq_u32 vcc, -1, v{t0}"]
    E = 8
    last = G.place(T_[7] + E, epi(8) + epi(7))
    last = wd_dma(G, last + 1, RC, paircol(1), "wdC", step=3)
    assert last < T_[6] + E, (last, T_)
    last = G.place(T_[6] + E, epi(6))
    last = wd_dma(G, last + 1, RA, paircol(0), "wdD", step=3)
    fs = [lambda t=t: st.vmem(f"buffer_load_dwordx2 v[{XR+2*t}:{XR+2*t+1}], v{vXO}, s[{sX}:{sX+3}], s{44+t} offen", "xr") for t in range(4)]
    fs.append(lambda: st.vmem(f"buffer_load_dwordx2 v[{X8}:{X8+1}], v{vXO8}, s[{sX}:{sX+3}], s48 offen", "xr"))
    last = G.place(last + 1, fs, step=1)
    assert last < T_[5], (last, T_)
    last = G.place(T_[5], pload(7) + [lambda: st.vmem(poll_ld("s14"), "p4")], step=1)
    last = G.place(max(last + 1, T_[5] + E), epi(5))
    last = G.place(last + 1, [lambda l=l: st.vmem(l, "p8") for l in ld8], step=2)
    last = G.place(last + 1, [lambda: st.wait(vm="xr")] + addpk(SUM, XR, 8, True) + addpk(S8, X8, 2, True))
    assert last < T_[4], (last, T_)
    last = G.place(T_[4], pload(6), step=1)
    last = G.place(last + 1, [lambda: st.wait(vm="p4")] + check([poll_ld("s14")], poll_t))
    last = G.place_x(last + 1, ["s_mov_b32 m0, s13",
        lambda: st.vmem(f"buffer_load_dwordx4 v{vYs}, {WS}, s40 offen{sc} lds", "yl"),
        lambda: st.vmem(f"buffer_load_dwordx4 v{vYs}, {WS}, s41 offen offset:1024{sc} lds", "yl"),
        lambda: st.vmem(f"buffer_load_dwordx4 v{vYs8}, {WS}, s42 offen offset:2048{sc} lds", "yl")])
    last = G.place(last + 1, epi(4))
    last = G.place(last + 1, padd(7))
    assert last < T_[3], (last, T_)
    last = G.place(T_[3], pload(5), step=1)
    last = G.place(max(last + 1, T_[3] + E), epi(3))
    last = G.place(last + 1, padd(6))
    fs = [lambda: st.wait(vm="yl")]
    fs += [lambda t=t: st.lds(f"ds_read_b64_tr_b16 v[{YR+2*t}:{YR+2*t+1}], v{vYr} offset:{32*t}", "yr") for t in range(4)]
    fs += [lambda: st.lds(f"ds_read_b64_tr_b16 v[{Y8}:{Y8+1}], v{vYr8} offset:2048", "yr")]
    last = G.place(last + 1, fs, step=1)
    assert last < T_[2], (last, T_)
    last = G.place(T_[2], pload(4), step=1)
    last = G.place(max(last + 1, T_[2] + E), epi(2))
    last = G.place(last + 1, padd(5))
    last = G.place(last + 1, pload(3), step=1)
    assert last < T_[1], (last, T_)
    last = G.place(T_[1] + 4, epi(1))
    last = G.place(last + 1, padd(4))
    last = G.place(last + 1, pload(2), step=1)
    last = G.place(max(last + 1, T_[0] - P.get("l1", 4)), pload(1), step=1)
    print("g2 fillers end at", last, "of", len(G.mf), file=sys.stderr)
    G.emit()
    if STAMP[0]: mk(6)()
    st.wait(lg="all")
    run(addpk(SUM, YR, 8) + addpk(S8, Y8, 2))
    st.wait(vm="p8"); run(check(ld8, t8))
    for i in range(8): run(addpk(S8, IN8 + 2 * i, 2))
    a(f"v_cvt_pk_bf16_f32 v{PK}, v{S8}, v{S8+1}"); a(f"v_cvt_pk_bf16_f32 v{PK+1}, v{S8+2}, v{S8+3}")
    st.vmem(f"buffer_store_dwordx2 v[{PK}:{PK+1}], v{vXO8}, s[{sO}:{sO+3}], s48 offen", "o")
    for i in range(16): a(f"v_add_f32 v{SUM+i}, v{SUM+i}, v{accof[0]+i}")
    run(padd(3)); run(padd(2)); run(padd(1))
    for t in range(4):
        o = PK + 4 + 2 * t
        a(f"v_cvt_pk_bf16_f32 v{o}, v{SUM+4*t}, v{SUM+4*t+1}"); a(f"v_cvt_pk_bf16_f32 v{o+1}, v{SUM+4*t+2}, v{SUM+4*t+3}")
        st.vmem(f"buffer_store_dwordx2 v[{o}:{o+1}], v{vXO}, s[{sO}:{sO+3}], s{44+t} offen", "o")
    if STAMP[0]:
        a("s_waitcnt vmcnt(0)"); stamp(a, 7)
        if "probe" in P:
            i = P["probe"]
            a(f"v_readfirstlane_b32 s76, v{vTok}"); a("s_waitcnt lgkmcnt(0)")
            a(f"s_sub_u32 s77, s{84+2*i}, s76" if i >= 0 else "s_mov_b32 s77, 0")
            a("s_add_u32 s77, s77, 6000")
            a("L_probe:"); a("s_sleep 2"); a("s_memrealtime s[78:79]"); a("s_waitcnt lgkmcnt(0)")
            a("s_sub_u32 s78, s78, s76"); a("s_cmp_lt_i32 s78, s77"); a("s_cbranch_scc1 L_probe")
        else: stamp_flush(a, 0, 8, sw)
    a("L_end:")
    a("s_endpgm")
    for (L, B, loads, test) in slow:
        a(f"{L}:")
        a("s_add_u32 s3, s3, 1"); a(f"s_cmp_gt_u32 s3, {TMO}"); a("s_cbranch_scc1 L_end2")
        run(loads); a("s_waitcnt vmcnt(0)"); run(test)
        a(f"s_cbranch_vccnz {L}"); a(f"s_branch {B}")
    a("L_end2:")
    a.end(n, 256, 256, 163840, vgpr=512, accum=256)

def build_text(hdr="", **kw):
    a = Asm(); k_fused(a, **kw)
    return a.text(hdr, single=True)

if __name__ == "__main__":
    if "stamp" in sys.argv: STAMP[0] = True
    kw = {}; P = {}
    for x in sys.argv[2:]:
        if "=" in x:
            k_, v_ = x.split("=");
            if k_ in ("RING", "NW", "XD", "xstep"): kw[k_] = int(v_)
            else: P[k_] = int(v_)
    open(sys.argv[1], "w").write(build_text(header(), P=P, **kw))
```

```python
from gen_conv import *
FL = 0x900000
F1 = FL; F2 = FL + 0x10000; FA = FL + 0x30000; FB = FL + 0x50000; F4 = FL + 0x70000; FP = FL + 0x90000
PB_OFF = 0x2200000
WS_SZ = 0x4000000
OOB = 0x40000000
TMO = 200000

class V:
    def __init__(self, txt, tag=None, m0=None): self.txt = txt; self.tag = tag; self.m0 = m0

class G2(Gaps):
    def __init__(self, st):
        super().__init__(st); self.vp = {}; self.rec = None
    def emitv(self, v):
        self.st.vmem(v.txt, v.tag)
        if self.rec is not None: self.rec.append(v)
    def pv(self, m, v, sep):
        g = m + 1 if v.m0 else m
        while not (self.cost.get(g, 0) < 2 and (not v.m0 or self.cost.get(g - 1, 0) < 2)
                   and all(abs(g - p) >= min(sep, q) for p, q in self.vp.items())): g += 1
        if v.m0: self.add_gap(g - 1, v.m0)
        self.add_gap(g, lambda: self.emitv(v)); self.vp[g] = 99
        return g
    def seq(self, m, fs, sep=5, step=0):
        nv = m
        for f in fs:
            if isinstance(f, V):
                m = self.pv(max(m, nv), f, sep); nv = m + step - (1 if f.m0 else 0)
            else: m = self.place(m, [f])
        return m

def k_fused(a, RING=7, NW=5, XD=3, xstep=6, P=None):
    P = dict(P or {})
    n = NAME + "_kernel"; a.begin(n); stamp(a, 0)
    sc = " sc1"
    sWg, sWu, sW2, sWS, sWd, sX, sO, sDbg = 4, 8, 12, 16, 20, 24, 28, 76
    sw, sk, stt, sC, sg, sM, sM1, sXo = 32, 33, 34, 35, 36, 37, 38, 39
    sKS, sHo, sWo, sCh, sPo, sP8 = 40, 58, 67, 83, 100, 101
    P2B = RING * 8192; CVB = 163840 - 3 * CV_LDS; LNB = P2B + 36864; YB = 36864
    assert LNB <= CVB
    ACC = 0; ACC2 = 128; XV = 160; WR = 192; HD = 212; TMP = 216
    vTR = 232; vTR2 = 236; vW0 = 237; vW1 = 238; vW2 = 239; vX = 240; vX4 = 241; vH2 = 242; vl = 243
    t0, t1, t2, t3 = 244, 245, 246, 247
    vTok = 248; vPl = 250; vL0 = 252; vPa = 253; vD0 = 254; vD1 = 255
    WS = f"s[{sWS}:{sWS+3}]"
    slow = []
    FINE = STAMP[0] and "ph" in P
    def fine(G, ph):
        if FINE and P["ph"] == ph:
            for i in range(6): G.add_pre(P["sb"] + i * P["ss"], f"{'s_memtime' if P.get('cyc') else 's_memrealtime'} s[{86+2*i}:{87+2*i}]", cost=0)
    def run(fs):
        for f in fs:
            if isinstance(f, str): a(f)
            elif isinstance(f, V):
                if f.m0: a(f.m0); a("s_nop 0")
                st.vmem(f.txt, f.tag)
            else: f()
    def lines(t): return [f.strip().replace("@", "\n") for f in t.split("\n") if f.strip()]
    def check(loads, test):
        L = a.label("slow"); B = a.label("back")
        slow.append((L, B, loads, test))
        return list(test) + [f"s_cbranch_vccnz {L}\n{B}:"]
    a(f"""
    s_cmp_ge_u32 s2, 256
    s_cbranch_scc1 L_end
    s_load_dwordx2 s[{sX}:{sX+1}], s[0:1], {OFF['x']}
    s_load_dwordx2 s[{sWS}:{sWS+1}], s[0:1], {OFF['ws']}
    s_load_dwordx2 s[{sWg}:{sWg+1}], s[0:1], {OFF['wg']}
    s_load_dwordx2 s[{sWu}:{sWu+1}], s[0:1], {OFF['wu']}
    s_load_dwordx2 s[{sWd}:{sWd+1}], s[0:1], {OFF['wd']}
    s_load_dwordx2 s[{sO}:{sO+1}], s[0:1], {OFF['out']}
    s_load_dwordx2 s[{sDbg}:{sDbg+1}], s[0:1], {OFF['dbg']}
    v_lshrrev_b32 v{t0}, 6, v0
    v_and_b32 v{vl}, 63, v0
    s_mov_b32 s3, 0
    v_readfirstlane_b32 s{sw}, v{t0}
    """)
    for d, sz in ((sX, X_SZ), (sWS, WS_SZ), (sWg, W_SZ), (sWu, W_SZ + 1024), (sWd, W_SZ), (sO, X_SZ), (sDbg, 256), (sW2, W_SZ)):
        a(f"s_mov_b32 s{d+2}, {sz}"); a(f"s_mov_b32 s{d+3}, 0x00020000")
    a(f"s_cmp_lg_u32 s{sw}, 0")
    a("s_cbranch_scc1 L_kg")

    def setup():
        a(f"""
        s_and_b32 s{sk}, s2, 7
        s_bfe_u32 s{stt}, s2, 0x30003
        s_lshr_b32 s{sC}, s2, 6
        s_lshl_b32 s{sg}, s{stt}, 2
        s_add_u32 s{sg}, s{sg}, s{sw}
        s_lshl_b32 s{sM}, s{sw}, 11
        s_lshl_b32 s{sM1}, s{sw}, 10
        s_and_b32 s{sHo}, s{sw}, 1
        s_cselect_b32 s{sW2}, s{sWu}, s{sWg}
        s_cselect_b32 s{sW2+1}, s{sWu+1}, s{sWg+1}
        s_sub_u32 s{sWu}, s{sWu}, 1024
        s_subb_u32 s{sWu+1}, s{sWu+1}, 0
        v_lshrrev_b32 v{t0}, 3, v{vl}
        v_and_b32 v{t1}, 3, v{t0}
        v_xor_b32 v{t1}, s{sHo}, v{t1}
        v_lshlrev_b32 v{t1}, 1, v{t1}
        v_and_b32 v{t2}, 7, v{vl}
        v_xor_b32 v{t1}, v{t1}, v{t2}
        v_mul_u32_u24 v{t0}, 9216, v{t0}
        v_lshl_add_u32 v{t0}, v{t1}, 4, v{t0}
        s_mul_i32 s{sHo+1}, s{sw}, {8*9216}
        s_mul_i32 s{sHo+2}, s{sk}, 1152
        s_lshl_b32 s{sHo+3}, s{sC}, 7
        s_add_u32 s{sHo+1}, s{sHo+1}, s{sHo+2}
        s_add_u32 s{sHo+1}, s{sHo+1}, s{sHo+3}
        v_add_u32 v{vW0}, s{sHo+1}, v{t0}
        v_add_u32 v{vW1}, 640, v{vW0}
        v_lshrrev_b32 v{t0}, 1, v{vl}
        v_and_b32 v{t1}, 19, v{t0}
        v_bfe_u32 v{t2}, v{t0}, 2, 1
        v_lshl_add_u32 v{t1}, v{t2}, 3, v{t1}
        v_bfe_u32 v{t2}, v{t0}, 3, 1
        v_lshl_add_u32 v{t1}, v{t2}, 2, v{t1}
        v_mul_u32_u24 v{t1}, 9216, v{t1}
        v_and_b32 v{t2}, 1, v{vl}
        v_lshl_add_u32 v{t1}, v{t2}, 4, v{t1}
        s_lshr_b32 s{sHo+1}, s{sw}, 1
        s_mul_i32 s{sHo+1}, s{sHo+1}, 294912
        s_add_u32 s{sHo+1}, s{sHo+1}, s{sHo+2}
        s_lshl_b32 s{sHo+3}, s{sC}, 5
        s_add_u32 s{sHo+1}, s{sHo+1}, s{sHo+3}
        s_add_u32 s{sHo+1}, s{sHo+1}, 512
        v_add_u32 v{vW2}, s{sHo+1}, v{t1}
        """)
        for k in range(18): a(f"s_mov_b32 s{sKS+k}, {k*294912}")
    def setup2():
        a(f"""
        s_mul_i32 s{sXo}, s{sg}, 73728
        v_lshlrev_b32 v{vX}, 4, v{vl}
        v_add_u32 v{vX4}, 4096, v{vX}
        v_lshrrev_b32 v{t0}, 4, v{vl}
        v_bfe_u32 v{t1}, v{vl}, 2, 2
        v_and_b32 v{t2}, 3, v{vl}
        v_lshlrev_b32 v{t2}, 3, v{t2}
        v_lshl_add_u32 v{t3}, v{t1}, 7, v{t2}
        v_lshl_add_u32 v{t3}, v{t0}, 11, v{t3}
        v_lshl_add_u32 v{vTR2}, v{t1}, 5, v{t2}
        v_and_b32 v{t2}, 1, v{t0}
        v_lshl_add_u32 v{vTR2}, v{t2}, 7, v{vTR2}
        v_xor_b32 v{t1}, v{t1}, v{t2}
        v_lshrrev_b32 v{t0}, 1, v{t0}
        v_lshl_add_u32 v{vTR2}, v{t0}, 9, v{vTR2}
        v_add_u32 v{vTR2}, {P2B}, v{vTR2}
        """)
        for t in range(4):
            a(f"v_xor_b32 v{t0}, {t}, v{t1}")
            a(f"v_lshl_add_u32 v{vTR+t}, v{t0}, 5, v{t3}")
        a(f"s_mul_i32 s{sPo}, s{sk}, {32*73728}")
        a(f"s_add_u32 s{sPo}, s{sPo}, s{sXo}")
        a(f"s_add_u32 s{sPo}, s{sPo}, {HF_OFF}")
        a(f"s_mul_i32 s{sP8}, s{sk}, {576*1152}")
        for p in range(9):
            if p == 4: a(f"s_mov_b32 s{sWo+p}, 4")
            elif p < 4: a(f"s_xor_b32 s{sWo+p}, s{sC}, {p}")
            else:
                a(f"s_xor_b32 s{sWo+p}, s{sC}, {8-p}"); a(f"s_add_u32 s{sWo+p}, s{sWo+p}, 5")
            a(f"s_lshl_b32 s{sHo+p}, s{sWo+p}, 13")
            a(f"s_add_u32 s{sHo+p}, s{sHo+p}, s{sPo}")
            a(f"s_mul_i32 s{sWo+p}, s{sWo+p}, {64*1152}")
            a(f"s_add_u32 s{sWo+p}, s{sWo+p}, s{sP8}")
        a(f"""
        s_lshr_b32 s{sPo}, s{sC}, 1
        s_lshl_b32 s{sPo}, s{sPo}, 12
        s_and_b32 s{sP8}, s{sC}, 1
        s_lshl_b32 s{sP8}, s{sP8}, 9
        s_add_u32 s{sPo}, s{sPo}, s{sP8}
        v_lshrrev_b32 v{t0}, 5, v{vl}
        v_lshlrev_b32 v{t0}, 9, v{t0}
        v_add3_u32 v{vH2}, v{vX}, v{t0}, s{sPo}
        s_lshl_b32 s{sP8}, s{stt}, 2
        s_add_u32 s{sP8}, s{sP8}, s{sC}
        s_lshl_b32 s{sP8}, s{sP8}, 19
        s_add_u32 s{sP8}, s{sP8}, {PB_OFF}
        s_lshl_b32 s{sPo}, s{sk}, 16
        s_add_u32 s{sPo}, s{sPo}, s{sM}
        s_add_u32 s{sPo}, s{sPo}, s{sP8}
        s_lshl_b32 m0, s{sw}, 17
        s_add_u32 s{sP8}, s{sP8}, m0
        s_lshl_b32 m0, s{sk}, 10
        s_add_u32 s{sP8}, s{sP8}, m0
        v_min_u32 v{vL0}, 1, v{vl}
        v_lshlrev_b32 v{vL0}, 30, v{vL0}
        v_and_b32 v{vPa}, 7, v{vl}
        v_lshlrev_b32 v{vPa}, 7, v{vPa}
        """)
        a(f"""
        v_lshrrev_b32 v{t0}, 4, v{vl}
        v_lshlrev_b32 v{t0}, 1, v{t0}
        v_and_b32 v{t1}, 7, v{vl}
        v_xor_b32 v{t0}, v{t0}, v{t1}
        s_lshr_b32 m0, s{sk}, 2
        s_lshl1_add_u32 m0, s{sC}, m0
        s_lshl_b32 m0, m0, 7
        v_lshl_add_u32 v{t0}, v{t0}, 4, m0
        v_lshrrev_b32 v{t1}, 3, v{vl}
        s_lshl_b32 m0, s{sw}, 3
        v_add_u32 v{t2}, m0, v{t1}
        v_mul_u32_u24 v{vD0}, 1152, v{t2}
        v_add_u32 v{vD0}, v{vD0}, v{t0}
        v_add_u32 v{vD1}, {32*1152}, v{vD0}
        """)
    tok_ld = f"buffer_load_dwordx2 v[{vTok}:{vTok+1}], off, s[{sDbg}:{sDbg+3}], 0{sc}"
    tok_t = [f"v_cmp_eq_u32 vcc, 0, v{vTok}"]
    def flag_st(so): return V(f"buffer_store_dwordx2 v[{vTok}:{vTok+1}], v{vL0}, {WS}, {so} offen{sc}")
    def poll_ld(so): return f"buffer_load_dwordx2 v[{vPl}:{vPl+1}], v{vPa}, {WS}, {so} offen{sc}"
    poll_t = [f"v_cmp_ne_u64 vcc, v[{vPl}:{vPl+1}], v[{vTok}:{vTok+1}]"]

    a("s_waitcnt lgkmcnt(0)")
    st = St(a)
    def ln_hook():
        setup(); setup2(); a(f"s_mov_b32 s{sCh}, 1024")
    ln_wave(st, 2, sX, sWS, None, vl, LNB, sc=sc, sT=80, after_ld=ln_hook)
    a(tok_ld)
    a(f"s_lshl_b32 s80, s2, 7"); a(f"s_add_u32 s80, s80, {F1}")
    a("s_waitcnt vmcnt(0)")
    run(check([tok_ld], tok_t))
    run([flag_st("s80")])
    a("s_branch L_join")
    a("L_kg:")
    for i, k in enumerate(("lar", "aim", "cre", "cim", "ldt", "dsk")):
        a(f"s_load_dwordx2 s[{52+4*i}:{53+4*i}], s[0:1], {OFF[k]}")
    a(f"s_memrealtime s[{sPo}:{sPo+1}]")
    a(f"""
    s_lshl_b32 s{sCh}, s2, 1
    s_lshr_b32 s80, s{sw}, 1
    s_add_u32 s{sCh}, s{sCh}, s80
    s_add_u32 s80, s2, 512
    s_cmp_eq_u32 s{sw}, 2
    s_cselect_b32 s{sCh}, s80, s{sCh}
    """)
    for i in range(6):
        a(f"s_mov_b32 s{54+4*i}, {576 * 256 if i < 4 else 1152}"); a(f"s_mov_b32 s{55+4*i}, 0x00020000")
    a(f"""
    s_waitcnt lgkmcnt(0)
    s_cmp_lg_u32 s{sCh}, 0
    s_cbranch_scc1 L_notok
    s_or_b32 s{sPo}, s{sPo}, 1
    v_mov_b32 v{vTok}, s{sPo}
    v_mov_b32 v{vTok+1}, s{sPo+1}
    buffer_store_dwordx2 v[{vTok}:{vTok+1}], off, s[{sDbg}:{sDbg+3}], 0{sc}
    L_notok:
    """)
    st = St(a)
    kpos = list(range(18)) + [16, 17] + list(range(16))
    def dma_stage(pos, v=None, dm=0, one=False):
        ks = kpos[pos]; m0 = f"s_add_u32 m0, s{sM}, {(pos % RING)*8192+dm}"
        if v is None: v = vW1 if pos >= 18 else vW0
        return [V(f"buffer_load_dwordx4 v{v}, s[{sWg}:{sWg+3}], s{sKS+ks} offen lds", ("w", pos), m0),
                V(f"buffer_load_dwordx4 v{v}, s[{sWu}:{sWu+3}], s{sKS+ks} offen offset:1024 lds", ("w", pos), None if one else m0)]
    def dma_p2(nn, v=None, dm=0):
        return [V(f"buffer_load_dwordx4 v{v or vW2}, s[{sW2}:{sW2+3}], s{sKS+2*nn} offen lds", ("w2", nn), f"s_add_u32 m0, s{sM1}, {P2B + nn*4096+dm}")]
    def kg_hook():
        setup()
        for k in range(RING - 1): run(dma_stage(k, one=True))
        for k in range(9): run(dma_p2(k))
        keep = list(st.vm)
        a(f"s_cmp_lg_u32 s{sw}, 2"); a("s_cbranch_scc1 L_now0")
        a(f"v_subrev_u32 v{t0}, {16*9216}, v{vW0}"); a(f"v_subrev_u32 v{t1}, 294912, v{vW2}")
        for k in range(RING - 1): run(dma_stage(k, t0, -4096, True))
        for k in range(9): run(dma_p2(k, t1, -2048))
        nw2 = len(st.vm) - 6
        a("L_now0:")
        st.vm = keep
        setup2()
        a(f"s_mul_i32 s{sW2}, s{sw}, {CV_LDS}")
        a(f"s_add_u32 s{sW2+1}, s{sW2}, {CVB - CV_LDS + CV_KR}")
        a(f"s_add_u32 s{sW2}, s{sW2}, {CVB - CV_LDS + CV_KR - KG_LDS}")
        a(f"s_cmp_ge_u32 s{sCh}, 576"); a("s_cbranch_scc1 L_pref")
        a(f"s_waitcnt vmcnt({nw2})")
        a(f"s_cmp_eq_u32 s{sw}, 2"); a("s_cbranch_scc1 L_par")
        st.wait(vm="kg5")
        a("L_par:")
    assert LNB + 8 * 1344 <= CVB + CV_KR - KG_LDS
    top = kgen_wave(st, sCh, 52, None, vl, sW2, sT=80, sKL=sW2 + 1, after_ld=kg_hook)
    assert top <= 232, top
    a("L_kgdone:")
    a(tok_ld)
    a("L_join:")
    if not FINE: stamp(a, 1)
    a(f"s_lshl_b32 s80, s{sg}, 10"); a(f"s_add_u32 s80, s80, {F1}")
    a(poll_ld("s80"))
    a("s_waitcnt vmcnt(0) lgkmcnt(0)")
    run(check([tok_ld], tok_t))
    run(check([poll_ld("s80")], poll_t))

    st = St(a)
    SEP = P.get("sep", 4)
    def xreg(ks, t):
        return f"a[{16*ks+4*t}:{16*ks+4*t+3}]" if ks < 16 else f"v[{XV+16*(ks-16)+4*t}:{XV+16*(ks-16)+4*t+3}]"
    def xload(ks):
        fs = [V(f"buffer_load_dwordx4 {xreg(ks,t)}, v{vX4 if ks & 1 else vX}, {WS}, s{sXo} offen offset:{t*1024}{sc}", ("x", ks, t)) for t in range(4)]
        if ks & 1: fs.append(f"s_add_u32 s{sXo}, s{sXo}, 8192")
        return fs
    for k in range(XD): run(xload(k))
    a("s_barrier")
    if not FINE: stamp(a, 2)
    G = G2(st)
    frags = []
    for q in range(18):
        for i in range(8): frags.append((0, q, i))
    for q in range(18):
        for i in range(2): frags.append((2, q, i))
    for q in range(18, 34):
        for i in range(8): frags.append((1, q, i))
    for kk in range(2):
        for q in (34, 35):
            for i in range(4): frags.append((1, q, 4 * kk + i))
    def rd(j):
        p, q, i = frags[j]; w = WR + 4 * (j % NW)
        if p == 2:
            ad = vTR2; off = q * 2048 + i * 1024; hs = 256
        else:
            ad = vTR + (i >> 1); off = (q % RING) * 8192 + (i & 1) * 1024; hs = 512
        return [lambda: st.lds(f"ds_read_b64_tr_b16 v[{w}:{w+1}], v{ad} offset:{off}", ("f", j)),
                lambda: st.lds(f"ds_read_b64_tr_b16 v[{w+2}:{w+3}], v{ad} offset:{off+hs}", ("f", j))]
    def accreg(p, i, t):
        if p == 2: return ACC2 + 16 * i + 4 * t
        return ACC + 16 * ((i >> 1) + 4 * (i & 1)) + 4 * t
    D = NW - 1
    first = {}
    for j, (p, q, i) in enumerate(frags):
        w = WR + 4 * (j % NW); ks = kpos[q]
        for t in range(4):
            c = accreg(p, i, t)
            src = "0" if q in (0, 18) else f"v[{c}:{c+3}]"
            m = G.mfma(f"v_mfma_f32_16x16x32_bf16 v[{c}:{c+3}], v[{w}:{w+3}], {xreg(ks,t)}, {src}")
            if t == 0:
                first.setdefault((p, q), m)
                if p == 0 and i == 0:
                    G.add_pre(m, lambda j=j, ks=ks: st.wait(vm=("x", ks, 3 if ks else 0), lg=("f", j)))
                else:
                    G.add_pre(m, lambda j=j: st.wait(lg=("f", j)))
            elif p == 0 and i == 0 and ks == 0:
                G.add_pre(m, lambda t=t: st.wait(vm=("x", 0, t)))
    NM = len(G.mf)
    BS = P.get("bs", 2)
    LA = RING - 1 - BS
    def bar(q):
        def f():
            tags = [("w", x) for x in range(q, q + (2 if q == 34 else BS)) if x >= RING - 1]
            if q == 34: tags.append("cv")
            if tags: st.wait(vm=tags)
            a("s_barrier")
        return f
    for j in range(D): run(rd(j))
    barpos = {}
    for j in range(len(frags) - D):
        p, q, i = frags[j + D]
        if i == 0 and p != 2 and q % BS == 0 and q < 35:
            G.add_pre(4 * j, bar(q), cost=2)
            barpos[q] = 4 * j
        r = rd(j + D)
        G.add_gap(4 * j, r[0]); G.add_gap(4 * j + 1, r[1])
    G.add_pre(NM - 4, "s_barrier")
    for q in sorted(barpos):
        fs = []
        for x in range(q + LA, q + LA + BS):
            if x < 36: fs += dma_stage(x)
        if fs: G.seq(barpos[q] + 1, fs, sep=2, step=P.get("wstep", 8))
    m = 2
    for ks in range(XD, 18):
        last = G.seq(m, xload(ks), sep=P.get("xsep", 3), step=xstep)
        m = max(m + 4 * xstep, last + 1)
        assert last < first[(0, ks)] - 40
    mx = last + 2
    XTd = ACC2; vA = ACC2 + 16; vB = ACC2 + 17; vZ = ACC2 + 18; Z4 = ACC2 + 20; PO = ACC2 + 24
    fs = lines(f"""s_lshl_b32 s12, s{sC}, 3
    s_add_u32 s12, s12, s{sk}
    s_mul_i32 s13, s{sg}, 18
    s_add_u32 s13, s13, s12
    s_lshl_b32 s13, s13, 12
    s_mul_i32 s14, s12, {32*XT_STR}
    s_add_u32 s14, s14, {XT_OFF+96}
    s_lshl_b32 s15, s12, 5
    s_add_u32 s15, s15, s{sg}
    s_lshl_b32 s15, s15, 7
    s_add_u32 s15, s15, {F2}
    s_cmp_lt_u32 s12, 18@s_cselect_b32 s12, 0, {OOB}
    s_add_u32 s13, s13, s12
    s_add_u32 s14, s14, s12
    s_add_u32 s15, s15, s12
    s_cmp_eq_u32 s{sg}, 0@s_cselect_b32 s12, s14, {OOB}
    s_lshl_b32 s81, s{sg}, 7
    s_add_u32 s14, s14, s81
    v_lshrrev_b32 v{t0}, 5, v{vl}
    v_bfe_u32 v{t1}, v{vl}, 1, 1
    v_lshlrev_b32 v{t1}, 8, v{t1}
    v_lshl_add_u32 v{vA}, v{t0}, 10, v{t1}
    v_bfe_u32 v{t0}, v{vl}, 4, 1
    v_lshl_add_u32 v{vA}, v{t0}, 7, v{vA}
    v_bfe_u32 v{t0}, v{vl}, 2, 2
    v_lshl_add_u32 v{vA}, v{t0}, 4, v{vA}
    v_and_b32 v{t0}, 1, v{vl}
    v_lshl_add_u32 v{vA}, v{t0}, 3, v{vA}
    s_lshl_b32 s81, s{sw}, 12
    s_add_u32 s81, s81, {CVB}
    v_add_u32 v{vA}, s81, v{vA}
    v_lshrrev_b32 v{t1}, 1, v{vl}
    v_mul_u32_u24 v{t1}, {XT_STR}, v{t1}
    v_lshl_add_u32 v{vZ}, v{t0}, 4, v{t1}
    v_and_b32 v{t0}, 15, v{vl}
    v_mul_u32_u24 v{t0}, {XT_STR}, v{t0}
    v_and_b32 v{t1}, 48, v{vl}
    v_add_u32 v{vB}, v{t0}, v{t1}""")
    fs += [f"v_mov_b32 v{Z4+i}, 0" for i in range(4)]
    lastxa = last = G.place(10, fs, cap=2)
    last = G.seq(max(last + 1, mx), [V(f"buffer_load_dwordx4 v{vX}, {WS}, s13 offen offset:{t*1024}{sc} lds", "xtl", "s_mov_b32 m0, s81") for t in range(4)], sep=SEP, step=6)
    def pst(src, so, off, tag): return V(f"buffer_store_dwordx4 v[{src}:{src+3}], v{vX}, {WS}, {so} offen offset:{off}{sc}", tag)
    NPO = 4
    def poison(G, m, step, PO=PO):
        fs = [f"v_mov_b32 v{PO+i}, -1" for i in range(4)]
        for s in range(NPO, 0, -1): fs += [f"s_xor_b32 s79, s{sPo}, {(s<<16)|(s<<13)}", pst(PO, "s79", 0, "po"), pst(PO, "s79", 1024, "po")]
        return G.seq(m, fs, sep=SEP, step=step)
    fs = [lambda: st.wait(vm="xtl")]
    for hf in range(2):
        for th in range(2):
            for r in range(2):
                d = XTd + 8 * hf + 4 * th + 2 * r
                fs.append(lambda d=d, o=th*2048+hf*512+r*64, vA=vA: st.lds(f"ds_read_b64_tr_b16 v[{d}:{d+1}], v{vA} offset:{o}", "xtr"))
    last = G.place(last + P.get("xtw", 70), fs, step=1)
    fs = [lambda: st.wait(lg="xtr")]
    for hf in range(2):
        if hf: fs.append(f"s_add_u32 s14, s14, {16*XT_STR}")
        for th in range(2):
            d = XTd + 8 * hf + 4 * th
            fs.append(V(f"buffer_store_dwordx4 v[{d}:{d+3}], v{vB}, {WS}, s14 offen offset:{32+th*64}{sc}", "xts"))
    fs.append(V(f"buffer_store_dwordx4 v[{Z4}:{Z4+3}], v{vZ}, {WS}, s12 offen{sc}", "xts"))
    lastxs = last = G.seq(last + 8, fs, sep=SEP, step=P.get("xss", 10))
    assert last < first[(2, 0)] - 4, (last, first[(2, 0)])
    if P.get("po", 0) == 0:
        last = poison(G, P.get("pom", mx), P.get("pos", 18))
        assert last < first[(2, 0)] - 4, (last, first[(2, 0)])
    PF = P.get("pf", 31)
    fs = lines(f"""s_lshr_b32 s76, s2, 3
    s_lshl2_add_u32 s76, s76, s{sw}
    v_lshrrev_b32 v{t0}, 2, v{vl}
    v_and_b32 v{t0}, 3, v{t0}
    v_mul_u32_u24 v{t0}, 9216, v{t0}
    v_and_b32 v{t1}, 3, v{vl}
    v_lshl_add_u32 v{t0}, v{t1}, 7, v{t0}
    s_add_u32 s77, s76, 16
    s_mul_i32 s77, s77, {4*9216}
    s_mul_i32 s78, s{sk}, 1152
    s_add_u32 s77, s77, s78
    v_min_u32 v{t1}, 4, v{vl}
    v_mul_u32_u24 v{t1}, 1152, v{t1}
    s_mul_i32 s78, s{sk}, 576
    s_mul_i32 s76, s76, 5
    s_add_u32 s78, s78, s76
    s_mul_i32 s78, s78, 1152""")
    lastq = G.place(lastxa + 1, fs)
    fs = []
    if PF & 4: fs += [V(f"buffer_load_dword v{HD}, v{t0}, s[{sWg}:{sWg+3}], s77 offen offset:640", "pf"), V(f"buffer_load_dword v{HD+1}, v{t0}, s[{sWu}:{sWu+3}], s77 offen offset:1664", "pf")]
    if PF & 8: fs += [V(f"buffer_load_dword v{HD+2}, v{t1}, s[{sWd}:{sWd+3}], s78 offen offset:1024", "pf")]
    lastq = G.seq(max(lastq + 1, lastxs + 1, P.get("pfm", 0)), fs, sep=SEP, step=P.get("pfs", 16))
    tcount = [0]
    def epi_main(p, kk, t):
        fs = []
        if p == 0:
            tmp = TMP + 4 * (tcount[0] % 4); tcount[0] += 1
        else: tmp = XV + 16 * kk + 4 * t
        for hh in range(2):
            g = ACC + 16 * (2 * kk + hh) + 4 * t; u = g + 64
            for e in range(4): fs.append(f"v_mul_f32 v{g+e}, v{g+e}, v{u+e}")
            fs.append(f"v_cvt_pk_bf16_f32 v{tmp+2*hh}, v{g}, v{g+1}")
            fs.append(f"v_cvt_pk_bf16_f32 v{tmp+2*hh+1}, v{g+2}, v{g+3}")
        fs.append(V(f"buffer_store_dwordx4 v[{tmp}:{tmp+3}], v{vX4 if kk else vX}, {WS}, s{sHo+8*p} offen offset:{t*1024}{sc}", ("h", p)))
        return fs
    def epi2():
        fs = []
        for tp in range(2):
            tmp = TMP + 4 * (tcount[0] % 4); tcount[0] += 1
            for hh in range(2):
                g = ACC2 + 4 * (2 * tp + hh); u = g + 16
                for e in range(4): fs.append(f"v_mul_f32 v{g+e}, v{g+e}, v{u+e}")
                fs.append(f"v_cvt_pk_bf16_f32 v{tmp+2*hh}, v{g}, v{g+1}")
                fs.append(f"v_cvt_pk_bf16_f32 v{tmp+2*hh+1}, v{g+2}, v{g+3}")
            fs.append("s_nop 1")
            fs.append(f"v_permlane32_swap_b32 v{tmp}, v{tmp+2}")
            fs.append(f"v_permlane32_swap_b32 v{tmp+1}, v{tmp+3}")
            fs.append("s_nop 0")
            fs.append(V(f"buffer_store_dwordx4 v[{tmp}:{tmp+3}], v{vH2}, {WS}, s{sHo+4} offen offset:{tp*2048}{sc}", ("h", 2)))
        return fs
    last = G.seq(first[(2, 0)] + 4, sum([epi_main(0, kk, t) for kk in range(2) for t in range(4)], []), sep=SEP, step=P.get("h0s", 16))
    assert last < first[(1, 18)] - 4, (last, first[(1, 18)])
    lastf2 = G.seq(first[(2, 0)] + P.get("f2", 60), [lambda: st.wait(vm="xts"), flag_st("s15")], sep=SEP)
    f1 = lambda q: first[(1, 18 + q)]
    last2 = G.seq(f1(0) + 8, epi2(), sep=SEP)
    T8B = 73728; RA, RB = 0, 90112; YB = T8B
    assert P2B + 3 * CV_XS + 32 <= T8B and T8B + 18432 <= CVB
    fs = lines(f"""v_lshrrev_b32 v{t0}, 1, v{vl}
    v_and_b32 v{t1}, 7, v{t0}
    v_bfe_u32 v{t2}, v{t0}, 3, 1
    v_lshl_add_u32 v{t1}, v{t2}, 4, v{t1}
    v_bfe_u32 v{t2}, v{t0}, 4, 1
    v_lshl_add_u32 v{t1}, v{t2}, 3, v{t1}
    s_cmp_lt_u32 s{sw}, 2@s_cselect_b64 vcc, -1, 0
    v_cndmask_b32 v{t1}, v{t0}, v{t1}, vcc
    s_and_b32 s78, s{sw}, 1
    s_mul_i32 s78, s78, {32*1152}
    s_lshl_b32 s79, s{sC}, 5
    s_add_u32 s78, s78, s79
    s_add_u32 s78, s78, 1024
    v_and_b32 v{t2}, 1, v{vl}
    v_lshl_add_u32 v{t2}, v{t2}, 4, s78
    v_mul_u32_u24 v{t0}, 1152, v{t0}
    v_mul_u32_u24 v{t1}, 1152, v{t1}
    v_add_u32 v{vW0}, v{t0}, v{t2}
    v_add_u32 v{vW2}, v{t1}, v{t2}""")
    lastv = last = G.place(max(lastf2, lastq) + 1, fs)
    fs = []
    for i in range(5):
        fs.append(f"s_cmp_lt_u32 s{sw}, 2\ns_cselect_b32 s78, s{sWo+2*i}, " + (f"s{sWo+2*i+1}" if i < 4 else f"s{sWo+7}"))
        m0 = f"s_add_u32 m0, s{sM1}, {T8B + i*4096}" if i < 4 else f"s_add_u32 m0, s79, {T8B + 3*4096}"
        if i == 4: fs.append(f"s_cmp_lt_u32 s{sw}, 2\ns_cselect_b32 s79, 4096, 0"); fs.append(f"s_add_u32 s79, s79, s{sM1}")
        fs.append(V(f"buffer_load_dwordx4 v{vW2 if i == 2 else vW0}, s[{sWd}:{sWd+3}], s78 offen lds", "wd8", m0))
    last = G.seq(max(last + 1, barpos[20] + 1), fs, sep=SEP, step=P.get("t8s", 24))
    lastt8 = last
    print('wd8 ends at', last, file=sys.stderr)
    fs = lines(f"""s_lshr_b32 s14, s2, 4
    s_lshr_b32 s15, s2, 5
    s_add_u32 s15, s15, 16
    s_cmp_lt_u32 s2, 64@s_cselect_b32 s15, s15, s14
    s_sub_u32 s15, s15, s14
    s_lshl_b32 s15, s15, 12
    s_lshl_b32 s14, s14, 12
    s_add_u32 s14, s14, {F2}
    v_lshrrev_b32 v{t0}, 5, v{vl}
    v_mul_lo_u32 v{t0}, v{t0}, s15
    v_and_b32 v{t1}, 31, v{vl}
    v_lshl_add_u32 v{vPa}, v{t1}, 7, v{t0}""")
    last = G.place(lastv + 1, fs)
    last = G.seq(max(last + 1, f1(0) + P.get("p2", 100)), [V(poll_ld("s14"), "p2")], sep=SEP)
    fs = lines(f"""s_mul_i32 s15, s2, {2*XT_STR}
    s_lshl_b32 s81, s{sw}, 1
    s_add_u32 s81, s81, {XT_OFF+128}
    s_mul_i32 s82, s2, {XT_STR}
    s_add_u32 s82, s82, {512*XT_STR}
    s_cmp_lt_u32 s2, 64@s_cselect_b32 s82, s82, {OOB}
    s_add_u32 s82, s82, s81
    s_add_u32 s15, s15, s81
    s_add_u32 s80, s15, {XT_STR}
    s_mul_i32 s81, s{sw}, {CV_XS}
    s_mul_i32 s{sXo}, s{sCh}, {XT_STR}
    s_add_u32 s{sXo}, s{sXo}, {XT_OFF}
    v_and_b32 v{t1}, 6, v{vl}
    v_and_b32 v{t0}, 1, v{vl}
    v_lshl_add_u32 v{t1}, v{t0}, 4, v{t1}""")
    last = G.place(last + 1, fs)
    last = G.place(max(last + 1, f1(0) + P.get("p2c", 180)), [lambda: st.wait(vm="p2")] + check([poll_ld("s14")], poll_t))
    last = G.seq(last + 1, [V(f"buffer_load_dwordx4 v[{HD}:{HD+3}], v{t1}, {WS}, s{sXo} offen offset:96{sc}", "cvh")], sep=SEP)
    mt = last + 1
    a_off = [f"s_lshl_b32 s12, s2, 2", f"s_add_u32 s12, s12, s{sw}", "s_lshl_b32 s12, s12, 7", f"s_add_u32 s13, s12, {FB}", f"s_add_u32 s12, s12, {FA}"]
    lastfa = G.seq(max(last2 + 1, f1(P.get("fa", 4))), a_off + [lambda: st.wait(vm=("h", 2)), flag_st("s12")], sep=SEP)
    fs = []
    for i in range(4):
        for b, so in ((0, "s15"), (1, "s82"), (2, "s80")):
            fs.append(V(f"buffer_load_dwordx4 v{vX}, {WS}, {so} offen offset:{i*1024}{sc} lds", "cv", f"s_add_u32 m0, s81, {CVB + b*CV_LDS + 32}"))
    lastcv = G.seq(last + 1, fs, sep=SEP, step=P.get("cvs", 6))
    print("conv loads end at", lastcv, "barrier", barpos[34], file=sys.stderr)
    vR = TMP
    vXO = TMP + 7; vXO8 = TMP + 8; vI8 = TMP + 9; vYr = TMP + 10; vYr8 = TMP + 11; vYs = TMP + 12; vYs8 = TMP + 13
    vA, vB, vY, vHd = TMP + 10, TMP + 11, TMP + 12, TMP + 13
    XR = [vTR, vTR + 2, HD, HD + 2]; X8 = TMP + 14
    fs = lines(f"""v_lshrrev_b32 v{t0}, 2, v{vl}
    v_and_b32 v{t1}, 3, v{vl}
    v_lshlrev_b32 v{t1}, 3, v{t1}
    v_lshl_add_u32 v{t0}, v{t0}, 7, v{t1}
    v_bfe_u32 v{t1}, v{vl}, 3, 2
    v_lshl_add_u32 v{t0}, v{t1}, 5, v{t0}
    s_andn2_b32 s76, 3, s{sk}
    s_lshl_b32 s76, s76, 5
    v_xor_b32 v{vR}, s76, v{t0}
    v_xor_b32 v{vR+2}, 32, v{vR}
    v_xor_b32 v{vR+4}, 64, v{vR}
    v_add_u32 v{vR+1}, 65536, v{vR}
    v_add_u32 v{vR+3}, 65536, v{vR+2}
    v_add_u32 v{vR+5}, 65536, v{vR+4}
    v_lshlrev_b32 v{t0}, 3, v{vl}
    v_add_u32 v{vR+6}, {T8B}, v{t0}
    s_mul_i32 s76, s{sw}, {CV_LDS}
    s_add_u32 s76, s76, {CVB - CV_LDS}
    v_bfe_u32 v{t0}, v{vl}, 1, 2
    v_mul_u32_u24 v{t0}, {CV_XS}, v{t0}
    v_and_b32 v{t1}, 1, v{vl}
    v_lshl_add_u32 v{t0}, v{t1}, 4, v{t0}
    s_cmp_eq_u32 s{sw}, 0@s_cselect_b32 s77, {P2B}, s76
    v_add_u32 v{vHd}, s77, v{t0}
    v_and_b32 v{t1}, 15, v{vl}
    v_lshrrev_b32 v{t2}, 4, v{vl}
    v_mul_u32_u24 v{vXO}, 1152, v{t1}
    v_lshl_add_u32 v{vXO}, v{t2}, 3, v{vXO}
    v_lshlrev_b32 v{vY}, 5, v{t1}
    v_lshlrev_b32 v{vB}, 4, v{t2}
    v_sub_u32 v{vB}, v{vB}, v{vY}
    v_lshrrev_b32 v{t0}, 1, v{t2}
    v_lshl_add_u32 v{vY}, v{t0}, 4, v{vY}
    v_and_b32 v{t0}, 1, v{t2}
    v_lshl_add_u32 v{vY}, v{t0}, 9, v{vY}
    s_add_u32 s77, s76, {CV_KR+480}
    v_add_u32 v{vB}, s77, v{vB}
    v_add_u32 v{t1}, 1, v{t1}
    v_and_b32 v{vA}, 3, v{t1}
    v_mul_u32_u24 v{vA}, {CV_XS}, v{vA}
    v_lshrrev_b32 v{t1}, 2, v{t1}
    v_lshl_add_u32 v{vA}, v{t1}, 3, v{vA}
    v_lshl_add_u32 v{vA}, v{t2}, 4, v{vA}
    v_add_u32 v{vA}, s76, v{vA}
    v_and_b32 v{t1}, 3, v{vl}
    v_lshl_add_u32 v{t0}, v{t0}, 4, v{t1}
    v_mul_u32_u24 v{vXO8}, 1152, v{t0}
    v_bfe_u32 v{t0}, v{vl}, 2, 2
    v_lshl_add_u32 v{vXO8}, v{t0}, 3, v{vXO8}
    v_lshrrev_b32 v{t3}, 5, v{vl}
    v_lshl_add_u32 v{vXO8}, v{t3}, 30, v{vXO8}
    v_lshlrev_b32 v{t1}, 4, v{t1}
    v_lshl_add_u32 v{t1}, v{t0}, 8, v{t1}
    v_lshl_add_u32 v{vI8}, v{t2}, 10, v{t1}
    s_and_b32 s14, s2, 0x3f
    v_and_b32 v{t1}, 3, v{vl}
    v_lshl_add_u32 v{t1}, v{t1}, 6, s14
    v_lshl_add_u32 v{t1}, v{t1}, 2, s{sw}
    v_lshlrev_b32 v{vPa}, 7, v{t1}
    s_mov_b32 s14, {FA}""")
    last = G.place(mt, fs)
    last = G.seq(max(last + 1, f1(0) + P.get("pa", 270)), [V(poll_ld("s14"), "pa")], sep=SEP)
    lastpa = last
    fs = lines(f"""s_lshl_b32 s76, s{sC}, 7
    s_lshl_b32 s43, s{sk}, 4
    s_lshl4_add_u32 s77, s{sC}, 512
    s_add_u32 s76, s76, s43
    s_lshl_b32 s78, s{stt}, 3
    s_add_u32 s78, s78, s{sk}
    s_lshl_b32 s40, s76, 12
    s_lshl_b32 s43, s{sg}, 7
    s_add_u32 s40, s40, s43
    s_add_u32 s40, s40, {YT_OFF}
    s_add_u32 s41, s40, {8*4096 - 1024}
    s_lshl_b32 s42, s77, 12
    s_lshl_b32 s43, s78, 6
    s_add_u32 s42, s42, s43
    s_add_u32 s42, s42, {YT_OFF - 2048}
    s_mul_i32 s44, s{sg}, {64*1152}
    s_lshl_b32 s43, s76, 1
    s_add_u32 s44, s44, s43
    s_add_u32 s45, s44, {16*1152}
    s_add_u32 s46, s44, {32*1152}
    s_add_u32 s47, s44, {48*1152}
    s_lshl_b32 s48, s78, 3
    s_add_u32 s48, s48, s{sw}
    s_mul_i32 s48, s48, {4*1152}
    s_lshl_b32 s43, s77, 1
    s_add_u32 s48, s48, s43
    s_and_b32 s49, s{sPo}, 0xffff0000
    s_lshl_b32 s43, s{sw}, 6
    s_add_u32 s49, s49, s43
    s_cmp_lt_u32 s{sCh}, 576@s_cselect_b32 s51, 0, {OOB}
    s_lshl_b32 s43, s{sCh}, 12
    s_add_u32 s43, s43, s51
    s_add_u32 s43, s43, {YT_OFF}
    s_lshl_b32 s50, s{sCh}, 7
    s_add_u32 s50, s50, s51
    s_add_u32 s50, s50, {F4}
    s_mov_b32 s51, 0xffff0000
    s_and_b32 s80, s{sk}, 4
    s_lshl_b32 s80, s80, 6
    s_sub_u32 s80, 128, s80
    v_add_u32 v{vW0}, s80, v{vD0}
    v_add_u32 v{vW2}, s80, v{vD1}
    s_lshl_b32 s80, s{sw}, 1
    s_lshr_b32 s80, 0xd8, s80
    s_and_b32 s80, s80, 3
    s_lshl_b32 s80, s80, 10""")
    sblk = fs
    last = G.place(max(lastpa + 1, f1(0) + P.get("pac", 340)), [lambda: st.wait(vm=["pa", "cvh"])] + check([poll_ld("s14")], poll_t) +
                   [lambda: st.lds(f"ds_write_b128 v{vHd}, v[{HD}:{HD+3}]", "cvw")])
    CA = 0; AFb = (128, 32); BFb = (64, 96)
    def rdA(rho, S):
        r = AFb[rho & 1] + 4 * S; off = 64 * (8 * S + rho)
        return [lambda: st.lds(f"ds_read_b64 v[{r}:{r+1}], v{vA} offset:{off}", ("A", rho, S)),
                lambda: st.lds(f"ds_read_b64 v[{r+2}:{r+3}], v{vA} offset:{off+8}", ("A", rho, S))]
    def rdB(rho, u):
        r = BFb[rho & 1] + 4 * u; off = 64 * (rho - 8 * u + 56)
        return [lambda: st.lds(f"ds_read_b128 v[{r}:{r+3}], v{vB} offset:{off}", ("B", rho, u))]
    G.place(barpos[34] + 2, sum([rdA(0, S) for S in range(8)], []), step=1)
    fs = []
    for t in range(4):
        e = epi_main(1, 0, t)
        fs += e[:4] + rdB(0, t) + e[4:10] + rdB(0, t + 4) + e[10:]
    laste = G.seq(NM - 32 + 1, fs, sep=SEP)
    print("g1 fillers end at", laste, file=sys.stderr)
    def hload(s): return [V(f"buffer_load_dwordx4 {xreg(s,t)}, v{vX4 if s & 1 else vX}, {WS}, s{sHo+(s>>1)} offen offset:{t*1024}{sc}", ("hl", s)) for t in range(4)]
    NH1 = P.get("nh1", 10)
    assert lastfa < lastcv
    if PF & 16:
        fs = lines(f"""s_lshr_b32 s79, s2, 3
        s_lshl2_add_u32 s79, s79, s{sw}
        s_lshl_b32 s82, s{sk}, 7
        s_add_u32 s79, s79, s82
        s_mul_i32 s79, s79, 5184
        s_and_b32 s79, s79, -128
        v_min_u32 v{t1}, 40, v{vl}
        v_lshlrev_b32 v{t1}, 7, v{t1}""")
        m = G.place(max(lastcv, lastt8, lastpa) + 1, fs)
        m = G.pv(max(m + 1, P.get("pfd", 1120)), V(f"buffer_load_dword v{t2}, v{t1}, s[{sWd}:{sWd+3}], s79 offen", "pf"), SEP)
        for i in range(1, P.get("pfw", 3)): G.vp[m + SEP * i] = 99
    G.seq(max(lastcv + 1, f1(4)), hload(0) + hload(1), sep=SEP, step=P.get("hstep", 5))
    for s_ in range(2, NH1): last = G.seq(max(last + (P.get("hstep", 5) if s_ > 2 else 1), f1(s_ + 3)), hload(s_), sep=SEP, step=P.get("hstep", 5))
    assert G.place(max(lastt8 + 1, lastpa + 1, lastcv + 1, barpos[28] + 1), sblk) < NM - 40
    print("h loads end at", last, "of", NM, file=sys.stderr)
    if P.get("po", 0) == 1:
        last = poison(G, P.get("pom", f1(3)), P.get("pos", 40))
        assert last < barpos[34] - 4
    def mk(i):
        def f():
            if not FINE: stamp(a, i)
        return f
    G.add_pre(first[(2, 0)], mk(3), cost=0)
    fine(G, 1)
    G.emit()
    mk(4)()
    a(f"s_cmp_ge_u32 s{sCh}, 576"); a("s_cbranch_scc1 L_idle")
    AC = 32; PK = 80; RH = (96, 128); IN8 = 0; A8 = 8; SS = 12; S8 = 16; Y8 = 20; YP = 128
    early = list(range(10)) + [16, 17]; lates = list(range(10, 16))
    areg = {s: vR + 2 * ((7 - s) % 3) for s in range(8)}
    accof = {8: 32, 7: 48, 6: 64, 5: 96, 4: 32, 3: 48, 2: 64, 1: 32, 0: 48}
    fr = []
    for grp in (early, lates):
        for s_ in grp: fr += [(8, s_), (7, s_)]
        for s_ in grp: fr.append((6, s_))
        for s_ in grp: fr.append((5, s_))
    for s in range(4, -1, -1):
        for s_ in range(18): fr.append((s, s_))
    def rd2(j):
        s, s_ = fr[j]; w = WR + 4 * (j % NW)
        if s == 8: ad, off, u = vR + 6, s_ * 1024, 512
        else: ad, off, u = areg[s] + (s_ >> 4), (s_ & 15) * 4096, 2048
        return [lambda: st.lds(f"ds_read_b64_tr_b16 v[{w}:{w+1}], v{ad} offset:{off}", ("g", j)),
                lambda: st.lds(f"ds_read_b64_tr_b16 v[{w+2}:{w+3}], v{ad} offset:{off+u}", ("g", j))]
    def ypair(i):
        o = YP + 4 * i; fs = []
        for T in (2 * i, 2 * i + 1):
            c = CA + 4 * T
            fs += [f"v_cvt_pk_bf16_f32 v{o+2*(T&1)}, v{c}, v{c+1}", f"v_cvt_pk_bf16_f32 v{o+2*(T&1)+1}, v{c+2}, v{c+3}"]
        fs += ["s_nop 0", f"v_permlane16_swap_b32 v{o}, v{o+2}", f"v_permlane16_swap_b32 v{o+1}, v{o+3}", "s_nop 0",
               V(f"buffer_store_dwordx4 v[{o}:{o+3}], v{vY}, {WS}, s43 offen offset:{i*1024}{sc}", "yst")]
        return fs
    mid = sum([hload(s) for s in range(NH1, 10)], [])
    xres = [V(f"buffer_load_dwordx2 v[{XR[t]}:{XR[t]+1}], v{vXO}, s[{sX}:{sX+3}], s{44+t} offen", "xr") for t in range(4)]
    xres.append(V(f"buffer_load_dwordx2 v[{X8}:{X8+1}], v{vXO8}, s[{sX}:{sX+3}], s48 offen", "xr"))
    late = sum([hload(s) for s in lates], [])
    if P.get("xin", 1): mid += xres; xres = []
    pubB = [lambda: st.wait(vm=("h", 1)), flag_st("s13")]
    NA = P.get("na", 9)
    def wd_dma(region, v2, ph, tag):
        return [V(f"buffer_load_dwordx4 v{v2[h]}, s[{sWd}:{sWd+3}], s{sWo+p} offen lds", tag, f"s_add_u32 m0, s{80 if p == 4 else sM1}, {region + p*8192 + h*4096}") for p, h in ph]
    wdA = wd_dma(RA, (vW0, vW2), [(p, h) for p in range(NA) for h in range(2)], "wdA")
    snap = (list(st.vm), st.vm_done, list(st.lg), st.lg_done)
    pairs = sorted([(S, u) for S in range(8) for u in range(8 - S)], key=lambda p: (max(p), p))
    def reads(rho):
        fs = []
        for i in range(8): fs += rdA(rho, i) + rdB(rho, i)
        return fs
    G = G2(st)
    seen = set()
    for rho in range(8):
        for (S, u) in (pairs if rho < 7 else sorted(pairs, key=lambda p: (p[0] + p[1], p))):
            T = S + u; c = CA + 4 * T
            src = f"v[{c}:{c+3}]" if T in seen else "0"
            seen.add(T)
            ra = AFb[rho & 1] + 4 * S; rb = BFb[rho & 1] + 4 * u
            m = G.mfma(f"v_mfma_f32_16x16x32_bf16 v[{c}:{c+3}], v[{ra}:{ra+3}], v[{rb}:{rb+3}], {src}")
            G.add_pre(m, lambda rho=rho, S=S, u=u: st.wait(lg=[("A", rho, S), ("B", rho, u)]), cost=0)
    fs = []
    for t in range(4): fs += epi_main(1, 1, t) + rdA(1, t) + rdB(1, t)
    for t in range(4, 8): fs += rdA(1, t) + rdB(1, t)
    last = G.seq(0, fs, sep=2)
    print("conv head ends at", last, file=sys.stderr)
    for rho in range(1, 7): G.place(36 * rho + 8, reads(rho + 1), cap=1)
    G.seq(P.get("fb", 110), pubB, sep=SEP)
    B2 = P.get("b2", 262)
    last = G.seq(last + 1, wdA, sep=SEP, step=P.get("astep", 8))
    print("wdA ends at", last, file=sys.stderr)
    last = G.seq(last + 1, mid, sep=SEP, step=P.get("mstep", 14))
    print("mid loads end at", last, file=sys.stderr)
    assert last < B2
    def bar_b2():
        st.wait(vm=["wd8", "wdA"], lg=("B", 7, 7)); a("s_barrier"); G.rec = []
    G.add_pre(B2, bar_b2, cost=2)
    G.place(40, [f"s_mov_b32 s14, {FB}"])
    G.pv(max(B2, P.get("pb", 0)), V(poll_ld("s14"), "pb"), SEP)
    for i, m in enumerate((2, 9, 20)): m = G.seq(252 + m + 3, ypair(i), sep=SEP)
    G.place(max(B2, 276), sum([rd2(j) for j in range(D)], []), step=1)
    fine(G, 2)
    G.emit()
    a("s_branch L_g2")
    rec = G.rec; tailsep = 288 - m
    snap2 = (list(st.vm), st.vm_done, list(st.lg), st.lg_done)
    a("L_idle:")
    st.vm, st.vm_done, st.lg, st.lg_done = snap
    for t in range(4): run(epi_main(1, 1, t))
    def fs4(i):
        if FINE and P["ph"] == 4: a(f"s_memrealtime s[{86+2*i}:{87+2*i}]")
    a(f"s_mov_b32 s14, {FB}")
    n0 = P.get("n0", 0)
    fs4(0); run(wdA[:n0]); fs4(1); run(pubB); fs4(2); run(wdA[n0:]); fs4(3)
    if NA < 9:
        a(f"s_cmp_lg_u32 s{sw}, 0"); a("s_cbranch_scc1 L_idle2")
        for op in range(8):
            a(f"v_add_u32 v{t0}, {8*op*1152}, v{vW0}")
            sw_ = (op & 4) | ((op & 1) << 1) | ((op >> 1) & 1)
            run([V(f"buffer_load_dwordx4 v{t0}, s[{sWd}:{sWd+3}], s{sWo+p} offen lds", "wd", f"s_mov_b32 m0, {RA + p*8192 + (sw_ if p == 4 else op)*1024}") for p in range(NA, 9)])
    a("L_idle2:")
    run(mid); fs4(4)
    if FINE and P["ph"] == 4: a("s_waitcnt vmcnt(0)"); fs4(5)
    a("s_waitcnt vmcnt(0) lgkmcnt(0)"); a("s_barrier")
    for j in range(D): run(rd2(j))
    run(rec)
    st.vm, st.vm_done, st.lg, st.lg_done = snap2
    assert st.lg[-2 * D:] == [("g", j >> 1) for j in range(2 * D)]
    a("L_g2:")
    mk(5)()
    G = G2(st); G.vp[-tailsep] = 99
    started = {0}; T_ = {}
    for j, (s, s_) in enumerate(fr):
        w = WR + 4 * (j % NW)
        for t in range(4):
            c = accof[s] + 4 * t
            src = f"v[{c}:{c+3}]" if s in started else "0"
            m = G.mfma(f"v_mfma_f32_16x16x32_bf16 v[{c}:{c+3}], v[{w}:{w+3}], {xreg(s_,t)}, {src}")
            if t == 0: G.add_pre(m, lambda j=j, s=s, s_=s_: st.wait(vm=("hl", s_) if (s == 8 and s_ < 16) else None, lg=("g", j)))
        started.add(s); T_[s] = m + 1
    def bar2(tag):
        def f():
            st.wait(vm=tag); a("s_barrier")
        return f
    for j in range(len(fr) - D):
        s, s_ = fr[j + D]
        if s_ == 0 and s == 3: G.add_pre(4 * j, bar2("wdD"), cost=2)
        r = rd2(j + D)
        G.add_gap(4 * j, r[0]); G.add_gap(4 * j + 1, r[1])
    B3 = P.get("b3", 186)
    assert B3 >= 96
    G.add_pre(B3, "s_barrier")
    for s in range(4, -1, -1):
        r = areg[s]
        G.place(T_[s + 3], [f"v_xor_b32 v{r}, {((s ^ (s + 3)) & 3) << 5}, v{r}"] + ([f"v_add_u32 v{r}, {RB}, v{r}"] if 1 <= s <= 3 else []) + [f"v_add_u32 v{r+1}, 65536, v{r}"])
    lasty = G.seq(2, ypair(3), sep=2)
    lastb = G.place(max(lasty + 1, P.get("pbc", 30)), [lambda: st.wait(vm="pb")] + check([poll_ld("s14")], poll_t))
    G.seq(P.get("f4", 100), [lambda: st.wait(vm="yst"), flag_st("s50")], sep=SEP)
    lastl = G.seq(lastb + 1, late, sep=SEP, step=P.get("lstep", 5))
    print("late loads end at", lastl, file=sys.stderr)
    wdB = wd_dma(RB, (vD0, vD1), [(p, h) for p in range(8, -1, -1) for h in (1, 0)], "wdD")
    nb = P.get("nb", 3)
    if nb: assert G.seq(lasty + 1, wdB[:nb], sep=SEP, step=5) < lastb + 4
    fs = lines(f"""s_mul_i32 s12, s{sw}, 3072
    s_add_u32 s12, s12, {YB}
    v_lshrrev_b32 v{t0}, 2, v{vl}
    v_and_b32 v{t1}, 3, v{vl}
    v_lshl_add_u32 v{t2}, v{t1}, 3, s12
    v_lshl_add_u32 v{vYr}, v{t0}, 7, v{t2}
    v_lshlrev_b32 v{t2}, 4, v{t1}
    v_lshl_add_u32 v{vYs8}, v{t0}, 12, v{t2}
    v_and_b32 v{t2}, 3, v{t0}
    v_lshl_add_u32 v{t3}, v{t1}, 2, v{t2}
    s_lshl_b32 s81, s{sw}, 3
    s_add_u32 s81, s81, s12
    v_lshl_add_u32 v{vYr8}, v{t3}, 6, s81
    v_bfe_u32 v{t3}, v{vl}, 4, 1
    v_lshl_add_u32 v{vYr8}, v{t3}, 5, v{vYr8}
    v_lshlrev_b32 v{t1}, 4, v{t1}
    v_mov_b32 v{SS+2}, 0x3f80
    v_mov_b32 v{SS+3}, 0
    v_lshlrev_b64 v[{SS+2}:{SS+3}], v{t1}, v[{SS+2}:{SS+3}]
    v_cmp_eq_u32 vcc, 0, v{t2}@s_nop 1@v_cndmask_b32 v{S8}, 0, v{SS+2}, vcc
    v_cndmask_b32 v{S8+1}, 0, v{SS+3}, vcc
    v_cmp_eq_u32 vcc, 1, v{t2}@s_nop 1@v_cndmask_b32 v{S8+2}, 0, v{SS+2}, vcc
    v_cndmask_b32 v{S8+3}, 0, v{SS+3}, vcc
    v_lshrrev_b32 v{t1}, 4, v{vl}
    v_cmp_eq_u32 vcc, v{t1}, v{t2}@s_nop 1@v_cndmask_b32 v{SS}, 0, v{SS+2}, vcc
    v_cndmask_b32 v{SS+1}, 0, v{SS+3}, vcc
    v_mov_b32 v{SS+2}, v{SS}
    v_mov_b32 v{SS+3}, v{SS+1}
    v_lshrrev_b32 v{t0}, 3, v{vl}
    v_and_b32 v{t1}, 7, v{vl}
    v_lshlrev_b32 v{t1}, 4, v{t1}
    v_lshl_add_u32 v{vYs}, v{t0}, 12, v{t1}
    s_sub_u32 s81, s77, s76
    s_sub_u32 s81, s81, 16
    v_mul_lo_u32 v{t0}, v{t3}, s81
    v_and_b32 v{t1}, 31, v{vl}
    v_add_lshl_u32 v{vPa}, v{t0}, v{t1}, 7
    s_lshl_b32 s14, s76, 7
    s_add_u32 s14, s14, {F4}
    s_add_u32 s13, s13, {FP - FB}
    v_and_b32 v{t0}, 7, v{vl}
    s_and_b32 s81, s2, 0xf8
    v_add_u32 v{t0}, s81, v{t0}
    s_lshr_b32 s81, s{sk}, 1
    v_lshl_add_u32 v{t2}, v{t0}, 2, s81
    v_lshl_add_u32 v{t0}, v{t0}, 2, s{sw}
    s_mov_b64 vcc, 0xff00
    v_cndmask_b32 v{t0}, v{t0}, v{t2}, vcc
    v_lshlrev_b32 v{t3}, 7, v{t0}""")
    last = G.place(lastb + 1, fs)
    if P.get("po", 0) == 2:
        last = poison(G, max(last + 1, P.get("pom", 110)), P.get("pos", 10), PO=24)
    pk = [0]
    def epi(s):
        fs = []; acc = accof[s]
        if s == 8: fs.append(f"s_add_u32 s82, s{sP8}, 65536")
        else: fs.append(f"s_xor_b32 s82, s{sPo}, {(s<<16)|(s<<13)}")
        for h in range(2):
            o = PK + 4 * (pk[0] % 4); pk[0] += 1
            for i in range(4):
                ii = i ^ 2 if s in (6, 4, 2) else i
                fs.append(f"v_cvt_pk_bf16_f32 v{o+i}, v{acc+8*h+2*ii}, v{acc+8*h+2*ii+1}")
            if s <= NPO: fs.append(f"v_min_u32 v{o}, -2, v{o}")
            if s == 8: fs.append(pst(o, "s82" if h else f"s{sP8}", 0, ("ps", s)))
            else: fs.append(pst(o, "s82", 1024 * h, ("ps", s)))
        return fs
    def inreg(s, h): return RH[h] + 2 + 4 * (7 - s)
    def pso(s): return 51 + s if s <= NPO else 56 + (s & 1)
    def pld(s): return [f"buffer_load_dwordx4 v[{inreg(s,h)}:{inreg(s,h)+3}], v{vX}, {WS}, s{pso(s)} offen offset:{1024*h}{sc}" for h in range(2)]
    def pload(s): return [f"s_xor_b32 s{pso(s)}, s{sPo}, {s<<13}"] + [V(l, ("pl", s)) for l in pld(s)]
    def pchk(ss):
        rs = [inreg(s, h) for s in ss for h in range(2)]
        t = [f"v_max_u32 v{t0}, v{rs[0]}, v{rs[1]}"] + [f"v_max3_u32 v{t0}, v{t0}, v{rs[i]}, v{rs[i+1]}" for i in range(2, len(rs), 2)]
        return [lambda: st.wait(vm=[("pl", s) for s in ss])] + check(sum([pld(s) for s in ss], []), t + [f"v_cmp_eq_u32 vcc, -1, v{t0}"])
    def unpk(dst, src): return [f"v_lshlrev_b32 v{dst}, 16, v{src}", f"v_and_b32 v{dst+1}, s51, v{src}"]
    E = P.get("E", 4)
    last = G.seq(T_[7], epi(8), sep=SEP)
    last = G.seq(last + 1, epi(7), sep=SEP)
    last = G.seq(max(last + 1, T_[6] + E), epi(6), sep=SEP)
    le = {}
    for s in range(5, 0, -1): le[s] = G.seq(T_[s] + E, epi(s), sep=SEP)
    last = G.seq(lastl + 1, wdB[nb:], sep=SEP, step=P.get("dstep", 6))
    assert last > B3
    G.seq(max(last + 1, P.get("xr", 0)), xres, sep=SEP, step=P.get("xrs", 10))
    print("wdD ends at", last, T_, file=sys.stderr)
    G.seq(P.get("p4", 312), [V(poll_ld("s14"), "p4")], sep=SEP)
    last = G.place(P.get("p4c", 376), [lambda: st.wait(vm="p4")] + check([poll_ld("s14")], poll_t) + [f"v_mov_b32 v{vPa}, v{t3}", f"s_mov_b32 s14, {FP}"])
    G.seq(P.get("fp", 350), [lambda: st.wait(vm=("ps", NPO + 1)), flag_st("s13")], sep=SEP)
    last = G.seq(last + 1, [V(f"buffer_load_dwordx4 v{vYs}, {WS}, s40 offen{sc} lds", "yl", "s_mov_b32 m0, s12"),
        V(f"buffer_load_dwordx4 v{vYs}, {WS}, s41 offen offset:1024{sc} lds", "yl", "s_mov_b32 m0, s12"),
        V(f"buffer_load_dwordx4 v{vYs8}, {WS}, s42 offen offset:2048{sc} lds", "yl", "s_mov_b32 m0, s12")], sep=SEP, step=6)
    assert last < P.get("pp", 480)
    last = G.place(le[3] + 1, [lambda: st.wait(vm="xr")] + sum([unpk(accof[0] + 4 * t + 2 * i, XR[t] + i) for t in range(4) for i in range(2)], []) +
                   unpk(A8, X8) + unpk(A8 + 2, X8 + 1))
    G.seq(P.get("pp", 480), [V(poll_ld("s14"), "pp")], sep=SEP)
    fs = [lambda: st.wait(vm="yl")]
    fs += [lambda t=t: st.lds(f"ds_read_b64_tr_b16 v[{RH[t>>1]+30*(t&1)}:{RH[t>>1]+30*(t&1)+1}], v{vYr} offset:{32*t}", "yr") for t in range(4)]
    fs += [lambda: st.lds(f"ds_read_b64_tr_b16 v[{Y8}:{Y8+1}], v{vYr8} offset:2048", "yr")]
    last = G.place(max(last + 1, P.get("yr", 490)), fs, step=1)
    last = G.place(last + 10, [lambda: st.wait(lg="yr")] + unpk(Y8 + 2, Y8) + unpk(Y8 + 4, Y8 + 1) + [f"v_add_f32 v{A8+i}, v{A8+i}, v{Y8+2+i}" for i in range(4)])
    last = G.place(max(last + 1, P.get("ppc", 545)), [lambda: st.wait(vm="pp")] + check([poll_ld("s14")], poll_t))
    assert last < T_[1] - 4
    fs = [f"s_add_u32 s50, s49, 4096"] + [V(f"buffer_load_dwordx4 v[{IN8+4*i}:{IN8+4*i+3}], v{vI8}, {WS}, s{49+i} offen{sc}", "p8") for i in range(2)]
    for s in range(7, 1, -1): fs += pload(s)
    last = G.seq(last + 1, fs, sep=SEP, step=P.get("pstep", 5))
    last = G.seq(max(last + 1, T_[0] - P.get("l1", 6)), pload(1), sep=2)
    print("g2 fillers end at", last, "of", len(G.mf), file=sys.stderr)
    fine(G, 3)
    G.emit()
    mk(6)()
    def summ(i):
        for h in range(2):
            c = accof[0] + 8 * h + 4 * (i & 1); r = RH[h] + 4 * i
            a(f"v_mfma_f32_16x16x32_bf16 v[{c}:{c+3}], v[{SS}:{SS+3}], v[{r}:{r+3}], v[{c}:{c+3}]")
    st.wait(vm="p8")
    for i in range(2): a(f"v_mfma_f32_16x16x32_bf16 v[{A8}:{A8+3}], v[{S8}:{S8+3}], v[{IN8+4*i}:{IN8+4*i+3}], v[{A8}:{A8+3}]")
    st.wait(vm=("pl", 5))
    for i in range(3): summ(i)
    a(f"v_cvt_pk_bf16_f32 v{Y8}, v{A8}, v{A8+1}"); a(f"v_cvt_pk_bf16_f32 v{Y8+1}, v{A8+2}, v{A8+3}")
    osc = ("", " sc1", " nt", " sc0 sc1")[P.get("osc", 0)]
    run(pchk((4, 3, 2)))
    for i in range(3, 6): summ(i)
    run(pchk((1,)))
    for i in range(6, 8): summ(i)
    st.vmem(f"buffer_store_dwordx2 v[{Y8}:{Y8+1}], v{vXO8}, s[{sO}:{sO+3}], s48 offen{osc}", "o")
    for n_, t in enumerate((0, 2, 1, 3)):
        o = PK + 2 * t; c = accof[0] + 4 * t
        a(f"s_nop {(4, 0, 0, 0)[n_]}")
        a(f"v_cvt_pk_bf16_f32 v{o}, v{c}, v{c+1}"); a(f"v_cvt_pk_bf16_f32 v{o+1}, v{c+2}, v{c+3}")
        st.vmem(f"buffer_store_dwordx2 v[{o}:{o+1}], v{vXO}, s[{sO}:{sO+3}], s{44+t} offen{osc}", "o")
    if STAMP[0]:
        a("s_waitcnt vmcnt(0)"); stamp(a, 7)
        if "probe" in P:
            i = P["probe"]
            a(f"v_readfirstlane_b32 s76, v{vTok}"); a("s_waitcnt lgkmcnt(0)")
            a(f"s_sub_u32 s77, s{84+2*i}, s76" if i >= 0 else "s_mov_b32 s77, 0")
            a("s_add_u32 s77, s77, 6000")
            a("L_probe:"); a("s_sleep 2"); a("s_memrealtime s[78:79]"); a("s_waitcnt lgkmcnt(0)")
            a("s_sub_u32 s78, s78, s76"); a("s_cmp_lt_i32 s78, s77"); a("s_cbranch_scc1 L_probe")
        else: stamp_flush(a, 0, 8, sw)
    a("L_end:")
    a("s_endpgm")
    a("L_pref:")
    PF = P.get("pf", 31)
    a(f"""
    s_lshr_b32 s80, s2, 3
    s_mul_i32 s82, s{sk}, 1152
    v_lshrrev_b32 v0, 2, v{vl}
    v_mul_u32_u24 v0, 9216, v0
    v_and_b32 v1, 3, v{vl}
    v_lshl_add_u32 v0, v1, 7, v0
    s_add_u32 s81, s80, 4
    s_mul_i32 s81, s81, {16*9216}
    s_add_u32 s81, s81, s82
    """)
    if PF & 1:
        a(f"buffer_load_dword v2, v0, s[{sWg}:{sWg+3}], s81 offen")
        a(f"buffer_load_dword v3, v0, s[{sWu}:{sWu+3}], s81 offen offset:1024")
    if PF & 2:
        a(f"""
        s_and_b32 s81, s80, 7
        s_add_u32 s81, s81, 32
        s_cmp_ge_u32 s81, 36
        s_cselect_b32 m0, 36, 0
        s_sub_u32 s81, s81, m0
        s_mul_i32 s81, s81, {16*9216}
        s_add_u32 s81, s81, s82
        s_cmp_ge_u32 s80, 24
        s_cbranch_scc1 L_kgdone
        s_cmp_ge_u32 s80, 16
        s_cbranch_scc1 L_pref2
        buffer_load_dword v4, v0, s[{sWg}:{sWg+3}], s81 offen offset:640
        s_branch L_kgdone
        L_pref2:
        buffer_load_dword v4, v0, s[{sWu}:{sWu+3}], s81 offen offset:1664
        """)
    a("s_branch L_kgdone")
    for (L, B, loads, test) in slow:
        a(f"{L}:")
        a("s_add_u32 s3, s3, 1"); a(f"s_cmp_gt_u32 s3, {TMO}"); a("s_cbranch_scc1 L_end2")
        run(loads); a("s_waitcnt vmcnt(0)"); run(test)
        a(f"s_cbranch_vccnz {L}"); a(f"s_branch {B}")
    a("L_end2:")
    a.end(n, 256, 256, 163840, vgpr=512, accum=256)

def build_text(hdr="", **kw):
    a = Asm(); k_fused(a, **kw)
    return a.text(hdr, single=True)

if __name__ == "__main__":
    if "stamp" in sys.argv: STAMP[0] = True
    kw = {}; P = {}
    for x in sys.argv[2:]:
        if "=" in x:
            k_, v_ = x.split("=");
            if k_ in ("RING", "NW", "XD", "xstep"): kw[k_] = int(v_)
            else: P[k_] = int(v_)
    open(sys.argv[1], "w").write(build_text(header(), P=P, **kw))
```

```python
from gen_conv import *
FL = 0x900000
F1 = FL; F2 = FL + 0x10000; FA = FL + 0x30000; FB = FL + 0x50000; F4 = FL + 0x70000; FP = FL + 0x90000
PB_OFF = 0x2200000
WS_SZ = 0x4000000
OOB = 0x40000000
TMO = 200000

class V:
    def __init__(self, txt, tag=None, m0=None): self.txt = txt; self.tag = tag; self.m0 = m0

class G2(Gaps):
    def __init__(self, st):
        super().__init__(st); self.vp = {}; self.rec = None
    def emitv(self, v):
        self.st.vmem(v.txt, v.tag)
        if self.rec is not None: self.rec.append(v)
    def pv(self, m, v, sep):
        g = m + 1 if v.m0 else m
        while not (self.cost.get(g, 0) < 2 and (not v.m0 or self.cost.get(g - 1, 0) < 2)
                   and all(abs(g - p) >= min(sep, q) for p, q in self.vp.items())): g += 1
        if v.m0: self.add_gap(g - 1, v.m0)
        self.add_gap(g, lambda: self.emitv(v)); self.vp[g] = 99
        return g
    def seq(self, m, fs, sep=5, step=0):
        nv = m
        for f in fs:
            if isinstance(f, V):
                m = self.pv(max(m, nv), f, sep); nv = m + step - (1 if f.m0 else 0)
            else: m = self.place(m, [f])
        return m

def k_fused(a, RING=7, NW=5, XD=3, xstep=6, P=None):
    P = dict(P or {})
    n = NAME + "_kernel"; a.begin(n); stamp(a, 0)
    sc = " sc1"
    sWg, sWu, sW2, sWS, sWd, sX, sO, sDbg = 4, 8, 12, 16, 20, 24, 28, 76
    sw, sk, stt, sC, sg, sM, sM1, sXo = 32, 33, 34, 35, 36, 37, 38, 39
    sKS, sHo, sWo, sCh, sPo, sP8 = 40, 58, 67, 83, 100, 101
    P2B = RING * 8192; CVB = 163840 - 3 * CV_LDS; LNB = P2B + 36864; YB = 36864
    assert LNB <= CVB
    ACC = 0; ACC2 = 128; XV = 160; WR = 192; HD = 212; TMP = 216
    vTR = 232; vTR2 = 236; vW0 = 237; vW1 = 238; vW2 = 239; vX = 240; vX4 = 241; vH2 = 242; vl = 243
    t0, t1, t2, t3 = 244, 245, 246, 247
    vTok = 248; vPl = 250; vL0 = 252; vPa = 253; vD0 = 254; vD1 = 255
    WS = f"s[{sWS}:{sWS+3}]"
    slow = []
    FINE = STAMP[0] and "ph" in P
    def fine(G, ph):
        if FINE and P["ph"] == ph:
            for i in range(6): G.add_pre(P["sb"] + i * P["ss"], f"{'s_memtime' if P.get('cyc') else 's_memrealtime'} s[{86+2*i}:{87+2*i}]", cost=0)
    def run(fs):
        for f in fs:
            if isinstance(f, str): a(f)
            elif isinstance(f, V):
                if f.m0: a(f.m0); a("s_nop 0")
                st.vmem(f.txt, f.tag)
            else: f()
    def lines(t): return [f.strip().replace("@", "\n") for f in t.split("\n") if f.strip()]
    def check(loads, test):
        L = a.label("slow"); B = a.label("back")
        slow.append((L, B, loads, test))
        return list(test) + [f"s_cbranch_vccnz {L}\n{B}:"]
    a(f"""
    s_cmp_ge_u32 s2, 256
    s_cbranch_scc1 L_end
    s_load_dwordx2 s[{sX}:{sX+1}], s[0:1], {OFF['x']}
    s_load_dwordx2 s[{sWS}:{sWS+1}], s[0:1], {OFF['ws']}
    s_load_dwordx2 s[{sWg}:{sWg+1}], s[0:1], {OFF['wg']}
    s_load_dwordx2 s[{sWu}:{sWu+1}], s[0:1], {OFF['wu']}
    s_load_dwordx2 s[{sWd}:{sWd+1}], s[0:1], {OFF['wd']}
    s_load_dwordx2 s[{sO}:{sO+1}], s[0:1], {OFF['out']}
    s_load_dwordx2 s[{sDbg}:{sDbg+1}], s[0:1], {OFF['dbg']}
    v_lshrrev_b32 v{t0}, 6, v0
    v_and_b32 v{vl}, 63, v0
    s_mov_b32 s3, 0
    v_readfirstlane_b32 s{sw}, v{t0}
    """)
    for d, sz in ((sX, X_SZ), (sWS, WS_SZ), (sWg, W_SZ), (sWu, W_SZ + 1024), (sWd, W_SZ), (sO, X_SZ), (sDbg, 256), (sW2, W_SZ)):
        a(f"s_mov_b32 s{d+2}, {sz}"); a(f"s_mov_b32 s{d+3}, 0x00020000")
    a(f"s_cmp_lg_u32 s{sw}, 0")
    a("s_cbranch_scc1 L_kg")

    def setup():
        a(f"""
        s_and_b32 s{sk}, s2, 7
        s_bfe_u32 s{stt}, s2, 0x30003
        s_lshr_b32 s{sC}, s2, 6
        s_lshl_b32 s{sg}, s{stt}, 2
        s_add_u32 s{sg}, s{sg}, s{sw}
        s_lshl_b32 s{sM}, s{sw}, 11
        s_lshl_b32 s{sM1}, s{sw}, 10
        s_and_b32 s{sHo}, s{sw}, 1
        s_cselect_b32 s{sW2}, s{sWu}, s{sWg}
        s_cselect_b32 s{sW2+1}, s{sWu+1}, s{sWg+1}
        s_sub_u32 s{sWu}, s{sWu}, 1024
        s_subb_u32 s{sWu+1}, s{sWu+1}, 0
        v_lshrrev_b32 v{t0}, 3, v{vl}
        v_and_b32 v{t1}, 3, v{t0}
        v_xor_b32 v{t1}, s{sHo}, v{t1}
        v_lshlrev_b32 v{t1}, 1, v{t1}
        v_and_b32 v{t2}, 7, v{vl}
        v_xor_b32 v{t1}, v{t1}, v{t2}
        v_mul_u32_u24 v{t0}, 9216, v{t0}
        v_lshl_add_u32 v{t0}, v{t1}, 4, v{t0}
        s_mul_i32 s{sHo+1}, s{sw}, {8*9216}
        s_mul_i32 s{sHo+2}, s{sk}, 1152
        s_lshl_b32 s{sHo+3}, s{sC}, 7
        s_add_u32 s{sHo+1}, s{sHo+1}, s{sHo+2}
        s_add_u32 s{sHo+1}, s{sHo+1}, s{sHo+3}
        v_add_u32 v{vW0}, s{sHo+1}, v{t0}
        v_add_u32 v{vW1}, 640, v{vW0}
        v_lshrrev_b32 v{t0}, 1, v{vl}
        v_and_b32 v{t1}, 19, v{t0}
        v_bfe_u32 v{t2}, v{t0}, 2, 1
        v_lshl_add_u32 v{t1}, v{t2}, 3, v{t1}
        v_bfe_u32 v{t2}, v{t0}, 3, 1
        v_lshl_add_u32 v{t1}, v{t2}, 2, v{t1}
        v_mul_u32_u24 v{t1}, 9216, v{t1}
        v_and_b32 v{t2}, 1, v{vl}
        v_lshl_add_u32 v{t1}, v{t2}, 4, v{t1}
        s_lshr_b32 s{sHo+1}, s{sw}, 1
        s_mul_i32 s{sHo+1}, s{sHo+1}, 294912
        s_add_u32 s{sHo+1}, s{sHo+1}, s{sHo+2}
        s_lshl_b32 s{sHo+3}, s{sC}, 5
        s_add_u32 s{sHo+1}, s{sHo+1}, s{sHo+3}
        s_add_u32 s{sHo+1}, s{sHo+1}, 512
        v_add_u32 v{vW2}, s{sHo+1}, v{t1}
        """)
        for k in range(18): a(f"s_mov_b32 s{sKS+k}, {k*294912}")
    def setup2():
        a(f"""
        s_mul_i32 s{sXo}, s{sg}, 73728
        v_lshlrev_b32 v{vX}, 4, v{vl}
        v_add_u32 v{vX4}, 4096, v{vX}
        v_lshrrev_b32 v{t0}, 4, v{vl}
        v_bfe_u32 v{t1}, v{vl}, 2, 2
        v_and_b32 v{t2}, 3, v{vl}
        v_lshlrev_b32 v{t2}, 3, v{t2}
        v_lshl_add_u32 v{t3}, v{t1}, 7, v{t2}
        v_lshl_add_u32 v{t3}, v{t0}, 11, v{t3}
        v_lshl_add_u32 v{vTR2}, v{t1}, 5, v{t2}
        v_and_b32 v{t2}, 1, v{t0}
        v_lshl_add_u32 v{vTR2}, v{t2}, 7, v{vTR2}
        v_xor_b32 v{t1}, v{t1}, v{t2}
        v_lshrrev_b32 v{t0}, 1, v{t0}
        v_lshl_add_u32 v{vTR2}, v{t0}, 9, v{vTR2}
        v_add_u32 v{vTR2}, {P2B}, v{vTR2}
        """)
        for t in range(4):
            a(f"v_xor_b32 v{t0}, {t}, v{t1}")
            a(f"v_lshl_add_u32 v{vTR+t}, v{t0}, 5, v{t3}")
        a(f"s_mul_i32 s{sPo}, s{sk}, {32*73728}")
        a(f"s_add_u32 s{sPo}, s{sPo}, s{sXo}")
        a(f"s_add_u32 s{sPo}, s{sPo}, {HF_OFF}")
        a(f"s_mul_i32 s{sP8}, s{sk}, {576*1152}")
        for p in range(9):
            if p == 4: a(f"s_mov_b32 s{sWo+p}, 4")
            elif p < 4: a(f"s_xor_b32 s{sWo+p}, s{sC}, {p}")
            else:
                a(f"s_xor_b32 s{sWo+p}, s{sC}, {8-p}"); a(f"s_add_u32 s{sWo+p}, s{sWo+p}, 5")
            a(f"s_lshl_b32 s{sHo+p}, s{sWo+p}, 13")
            a(f"s_add_u32 s{sHo+p}, s{sHo+p}, s{sPo}")
            a(f"s_mul_i32 s{sWo+p}, s{sWo+p}, {64*1152}")
            a(f"s_add_u32 s{sWo+p}, s{sWo+p}, s{sP8}")
        a(f"""
        s_lshr_b32 s{sPo}, s{sC}, 1
        s_lshl_b32 s{sPo}, s{sPo}, 12
        s_and_b32 s{sP8}, s{sC}, 1
        s_lshl_b32 s{sP8}, s{sP8}, 9
        s_add_u32 s{sPo}, s{sPo}, s{sP8}
        v_lshrrev_b32 v{t0}, 5, v{vl}
        v_lshlrev_b32 v{t0}, 9, v{t0}
        v_add3_u32 v{vH2}, v{vX}, v{t0}, s{sPo}
        s_lshl_b32 s{sP8}, s{stt}, 2
        s_add_u32 s{sP8}, s{sP8}, s{sC}
        s_lshl_b32 s{sP8}, s{sP8}, 19
        s_add_u32 s{sP8}, s{sP8}, {PB_OFF}
        s_lshl_b32 s{sPo}, s{sk}, 16
        s_add_u32 s{sPo}, s{sPo}, s{sM}
        s_add_u32 s{sPo}, s{sPo}, s{sP8}
        s_lshl_b32 m0, s{sw}, 17
        s_add_u32 s{sP8}, s{sP8}, m0
        s_lshl_b32 m0, s{sk}, 10
        s_add_u32 s{sP8}, s{sP8}, m0
        v_min_u32 v{vL0}, 1, v{vl}
        v_lshlrev_b32 v{vL0}, 30, v{vL0}
        v_and_b32 v{vPa}, 7, v{vl}
        v_lshlrev_b32 v{vPa}, 7, v{vPa}
        """)
        a(f"""
        v_lshrrev_b32 v{t0}, 4, v{vl}
        v_lshlrev_b32 v{t0}, 1, v{t0}
        v_and_b32 v{t1}, 7, v{vl}
        v_xor_b32 v{t0}, v{t0}, v{t1}
        s_lshr_b32 m0, s{sk}, 2
        s_lshl1_add_u32 m0, s{sC}, m0
        s_lshl_b32 m0, m0, 7
        v_lshl_add_u32 v{t0}, v{t0}, 4, m0
        v_lshrrev_b32 v{t1}, 3, v{vl}
        s_lshl_b32 m0, s{sw}, 3
        v_add_u32 v{t2}, m0, v{t1}
        v_mul_u32_u24 v{vD0}, 1152, v{t2}
        v_add_u32 v{vD0}, v{vD0}, v{t0}
        v_add_u32 v{vD1}, {32*1152}, v{vD0}
        """)
    tok_ld = f"buffer_load_dwordx2 v[{vTok}:{vTok+1}], off, s[{sDbg}:{sDbg+3}], 0{sc}"
    tok_t = [f"v_cmp_eq_u32 vcc, 0, v{vTok}"]
    def flag_st(so): return V(f"buffer_store_dwordx2 v[{vTok}:{vTok+1}], v{vL0}, {WS}, {so} offen{sc}")
    def poll_ld(so): return f"buffer_load_dwordx2 v[{vPl}:{vPl+1}], v{vPa}, {WS}, {so} offen{sc}"
    poll_t = [f"v_cmp_ne_u64 vcc, v[{vPl}:{vPl+1}], v[{vTok}:{vTok+1}]"]

    a("s_waitcnt lgkmcnt(0)")
    st = St(a)
    def ln_hook():
        setup(); setup2(); a(f"s_mov_b32 s{sCh}, 1024")
    ln_wave(st, 2, sX, sWS, None, vl, LNB, sc=sc, sT=80, after_ld=ln_hook)
    a(tok_ld)
    a(f"s_lshl_b32 s80, s2, 7"); a(f"s_add_u32 s80, s80, {F1}")
    a("s_waitcnt vmcnt(0)")
    run(check([tok_ld], tok_t))
    run([flag_st("s80")])
    a("s_branch L_join")
    a("L_kg:")
    for i, k in enumerate(("lar", "aim", "cre", "cim", "ldt", "dsk")):
        a(f"s_load_dwordx2 s[{52+4*i}:{53+4*i}], s[0:1], {OFF[k]}")
    a(f"s_memrealtime s[{sPo}:{sPo+1}]")
    a(f"""
    s_lshl_b32 s{sCh}, s2, 1
    s_lshr_b32 s80, s{sw}, 1
    s_add_u32 s{sCh}, s{sCh}, s80
    s_add_u32 s80, s2, 512
    s_cmp_eq_u32 s{sw}, 2
    s_cselect_b32 s{sCh}, s80, s{sCh}
    """)
    for i in range(6):
        a(f"s_mov_b32 s{54+4*i}, {576 * 256 if i < 4 else 1152}"); a(f"s_mov_b32 s{55+4*i}, 0x00020000")
    a(f"""
    s_waitcnt lgkmcnt(0)
    s_cmp_lg_u32 s{sCh}, 0
    s_cbranch_scc1 L_notok
    s_or_b32 s{sPo}, s{sPo}, 1
    v_mov_b32 v{vTok}, s{sPo}
    v_mov_b32 v{vTok+1}, s{sPo+1}
    buffer_store_dwordx2 v[{vTok}:{vTok+1}], off, s[{sDbg}:{sDbg+3}], 0{sc}
    L_notok:
    """)
    st = St(a)
    kpos = list(range(18)) + [16, 17] + list(range(16))
    def dma_stage(pos, v=None, dm=0, one=False):
        ks = kpos[pos]; m0 = f"s_add_u32 m0, s{sM}, {(pos % RING)*8192+dm}"
        if v is None: v = vW1 if pos >= 18 else vW0
        return [V(f"buffer_load_dwordx4 v{v}, s[{sWg}:{sWg+3}], s{sKS+ks} offen lds", ("w", pos), m0),
                V(f"buffer_load_dwordx4 v{v}, s[{sWu}:{sWu+3}], s{sKS+ks} offen offset:1024 lds", ("w", pos), None if one else m0)]
    def dma_p2(nn, v=None, dm=0):
        return [V(f"buffer_load_dwordx4 v{v or vW2}, s[{sW2}:{sW2+3}], s{sKS+2*nn} offen lds", ("w2", nn), f"s_add_u32 m0, s{sM1}, {P2B + nn*4096+dm}")]
    def kg_hook():
        setup()
        for k in range(RING - 1): run(dma_stage(k, one=True))
        for k in range(9): run(dma_p2(k))
        keep = list(st.vm)
        a(f"s_cmp_lg_u32 s{sw}, 2"); a("s_cbranch_scc1 L_now0")
        a(f"v_subrev_u32 v{t0}, {16*9216}, v{vW0}"); a(f"v_subrev_u32 v{t1}, 294912, v{vW2}")
        for k in range(RING - 1): run(dma_stage(k, t0, -4096, True))
        for k in range(9): run(dma_p2(k, t1, -2048))
        nw2 = len(st.vm) - 6
        a("L_now0:")
        st.vm = keep
        setup2()
        a(f"s_mul_i32 s{sW2}, s{sw}, {CV_LDS}")
        a(f"s_add_u32 s{sW2+1}, s{sW2}, {CVB - CV_LDS + CV_KR}")
        a(f"s_add_u32 s{sW2}, s{sW2}, {CVB - CV_LDS + CV_KR - KG_LDS}")
        a(f"s_cmp_ge_u32 s{sCh}, 576"); a("s_cbranch_scc1 L_pref")
        a(f"s_waitcnt vmcnt({nw2})")
        a(f"s_cmp_eq_u32 s{sw}, 2"); a("s_cbranch_scc1 L_par")
        st.wait(vm="kg5")
        a("L_par:")
    assert LNB + 8 * 1344 <= CVB + CV_KR - KG_LDS
    top = kgen_wave(st, sCh, 52, None, vl, sW2, sT=80, sKL=sW2 + 1, after_ld=kg_hook)
    assert top <= 232, top
    a("L_kgdone:")
    a(tok_ld)
    a("L_join:")
    if not FINE: stamp(a, 1)
    a(f"s_lshl_b32 s80, s{sg}, 10"); a(f"s_add_u32 s80, s80, {F1}")
    a(poll_ld("s80"))
    a("s_waitcnt vmcnt(0) lgkmcnt(0)")
    run(check([tok_ld], tok_t))
    run(check([poll_ld("s80")], poll_t))

    st = St(a)
    SEP = P.get("sep", 4)
    def xreg(ks, t):
        return f"a[{16*ks+4*t}:{16*ks+4*t+3}]" if ks < 16 else f"v[{XV+16*(ks-16)+4*t}:{XV+16*(ks-16)+4*t+3}]"
    def xload(ks):
        fs = [V(f"buffer_load_dwordx4 {xreg(ks,t)}, v{vX4 if ks & 1 else vX}, {WS}, s{sXo} offen offset:{t*1024}{sc}", ("x", ks, t)) for t in range(4)]
        if ks & 1: fs.append(f"s_add_u32 s{sXo}, s{sXo}, 8192")
        return fs
    for k in range(XD): run(xload(k))
    a("s_barrier")
    if not FINE: stamp(a, 2)
    G = G2(st)
    frags = []
    for q in range(18):
        for i in range(8): frags.append((0, q, i))
    for q in range(18):
        for i in range(2): frags.append((2, q, i))
    for q in range(18, 34):
        for i in range(8): frags.append((1, q, i))
    for kk in range(2):
        for q in (34, 35):
            for i in range(4): frags.append((1, q, 4 * kk + i))
    def rd(j):
        p, q, i = frags[j]; w = WR + 4 * (j % NW)
        if p == 2:
            ad = vTR2; off = q * 2048 + i * 1024; hs = 256
        else:
            ad = vTR + (i >> 1); off = (q % RING) * 8192 + (i & 1) * 1024; hs = 512
        return [lambda: st.lds(f"ds_read_b64_tr_b16 v[{w}:{w+1}], v{ad} offset:{off}", ("f", j)),
                lambda: st.lds(f"ds_read_b64_tr_b16 v[{w+2}:{w+3}], v{ad} offset:{off+hs}", ("f", j))]
    def accreg(p, i, t):
        if p == 2: return ACC2 + 16 * i + 4 * t
        return ACC + 16 * ((i >> 1) + 4 * (i & 1)) + 4 * t
    D = NW - 1
    first = {}
    for j, (p, q, i) in enumerate(frags):
        w = WR + 4 * (j % NW); ks = kpos[q]
        for t in range(4):
            c = accreg(p, i, t)
            src = "0" if q in (0, 18) else f"v[{c}:{c+3}]"
            m = G.mfma(f"v_mfma_f32_16x16x32_bf16 v[{c}:{c+3}], v[{w}:{w+3}], {xreg(ks,t)}, {src}")
            if t == 0:
                first.setdefault((p, q), m)
                if p == 0 and i == 0:
                    G.add_pre(m, lambda j=j, ks=ks: st.wait(vm=("x", ks, 3 if ks else 0), lg=("f", j)))
                else:
                    G.add_pre(m, lambda j=j: st.wait(lg=("f", j)))
            elif p == 0 and i == 0 and ks == 0:
                G.add_pre(m, lambda t=t: st.wait(vm=("x", 0, t)))
    NM = len(G.mf)
    BS = P.get("bs", 2)
    LA = RING - 1 - BS
    def bar(q):
        def f():
            tags = [("w", x) for x in range(q, q + (2 if q == 34 else BS)) if x >= RING - 1]
            if q == 34: tags.append("cv")
            if tags: st.wait(vm=tags)
            a("s_barrier")
        return f
    for j in range(D): run(rd(j))
    barpos = {}
    for j in range(len(frags) - D):
        p, q, i = frags[j + D]
        if i == 0 and p != 2 and q % BS == 0 and q < 35:
            G.add_pre(4 * j, bar(q), cost=2)
            barpos[q] = 4 * j
        r = rd(j + D)
        G.add_gap(4 * j, r[0]); G.add_gap(4 * j + 1, r[1])
    G.add_pre(NM - 4, "s_barrier")
    for q in sorted(barpos):
        fs = []
        for x in range(q + LA, q + LA + BS):
            if x < 36: fs += dma_stage(x)
        if fs: G.seq(barpos[q] + 1, fs, sep=2, step=P.get("wstep", 8))
    m = 2
    for ks in range(XD, 18):
        last = G.seq(m, xload(ks), sep=P.get("xsep", 3), step=xstep)
        m = max(m + 4 * xstep, last + 1)
        assert last < first[(0, ks)] - 40
    mx = last + 2
    XTd = ACC2; vA = ACC2 + 16; vB = ACC2 + 17; vZ = ACC2 + 18; Z4 = ACC2 + 20; PO = ACC2 + 24
    fs = lines(f"""s_lshl_b32 s12, s{sC}, 3
    s_add_u32 s12, s12, s{sk}
    s_mul_i32 s13, s{sg}, 18
    s_add_u32 s13, s13, s12
    s_lshl_b32 s13, s13, 12
    s_mul_i32 s14, s12, {32*XT_STR}
    s_add_u32 s14, s14, {XT_OFF+96}
    s_lshl_b32 s15, s12, 5
    s_add_u32 s15, s15, s{sg}
    s_lshl_b32 s15, s15, 7
    s_add_u32 s15, s15, {F2}
    s_cmp_lt_u32 s12, 18@s_cselect_b32 s12, 0, {OOB}
    s_add_u32 s13, s13, s12
    s_add_u32 s14, s14, s12
    s_add_u32 s15, s15, s12
    s_cmp_eq_u32 s{sg}, 0@s_cselect_b32 s12, s14, {OOB}
    s_lshl_b32 s81, s{sg}, 7
    s_add_u32 s14, s14, s81
    v_lshrrev_b32 v{t0}, 5, v{vl}
    v_bfe_u32 v{t1}, v{vl}, 1, 1
    v_lshlrev_b32 v{t1}, 8, v{t1}
    v_lshl_add_u32 v{vA}, v{t0}, 10, v{t1}
    v_bfe_u32 v{t0}, v{vl}, 4, 1
    v_lshl_add_u32 v{vA}, v{t0}, 7, v{vA}
    v_bfe_u32 v{t0}, v{vl}, 2, 2
    v_lshl_add_u32 v{vA}, v{t0}, 4, v{vA}
    v_and_b32 v{t0}, 1, v{vl}
    v_lshl_add_u32 v{vA}, v{t0}, 3, v{vA}
    s_lshl_b32 s81, s{sw}, 12
    s_add_u32 s81, s81, {CVB}
    v_add_u32 v{vA}, s81, v{vA}
    v_lshrrev_b32 v{t1}, 1, v{vl}
    v_mul_u32_u24 v{t1}, {XT_STR}, v{t1}
    v_lshl_add_u32 v{vZ}, v{t0}, 4, v{t1}
    v_and_b32 v{t0}, 15, v{vl}
    v_mul_u32_u24 v{t0}, {XT_STR}, v{t0}
    v_and_b32 v{t1}, 48, v{vl}
    v_add_u32 v{vB}, v{t0}, v{t1}""")
    fs += [f"v_mov_b32 v{Z4+i}, 0" for i in range(4)]
    lastxa = last = G.place(10, fs, cap=2)
    last = G.seq(max(last + 1, mx), [V(f"buffer_load_dwordx4 v{vX}, {WS}, s13 offen offset:{t*1024}{sc} lds", "xtl", "s_mov_b32 m0, s81") for t in range(4)], sep=SEP, step=6)
    def pst(src, so, off, tag): return V(f"buffer_store_dwordx4 v[{src}:{src+3}], v{vX}, {WS}, {so} offen offset:{off}{sc}", tag)
    NPO = 4
    def poison(G, m, step, PO=PO):
        fs = [f"v_mov_b32 v{PO+i}, -1" for i in range(4)]
        for s in range(NPO, 0, -1): fs += [f"s_xor_b32 s79, s{sPo}, {(s<<16)|(s<<13)}", pst(PO, "s79", 0, "po"), pst(PO, "s79", 1024, "po")]
        return G.seq(m, fs, sep=SEP, step=step)
    fs = [lambda: st.wait(vm="xtl")]
    for hf in range(2):
        for th in range(2):
            for r in range(2):
                d = XTd + 8 * hf + 4 * th + 2 * r
                fs.append(lambda d=d, o=th*2048+hf*512+r*64, vA=vA: st.lds(f"ds_read_b64_tr_b16 v[{d}:{d+1}], v{vA} offset:{o}", "xtr"))
    last = G.place(last + P.get("xtw", 70), fs, step=1)
    fs = [lambda: st.wait(lg="xtr")]
    for hf in range(2):
        if hf: fs.append(f"s_add_u32 s14, s14, {16*XT_STR}")
        for th in range(2):
            d = XTd + 8 * hf + 4 * th
            fs.append(V(f"buffer_store_dwordx4 v[{d}:{d+3}], v{vB}, {WS}, s14 offen offset:{32+th*64}{sc}", "xts"))
    fs.append(V(f"buffer_store_dwordx4 v[{Z4}:{Z4+3}], v{vZ}, {WS}, s12 offen{sc}", "xts"))
    lastxs = last = G.seq(last + 8, fs, sep=SEP, step=P.get("xss", 10))
    assert last < first[(2, 0)] - 4, (last, first[(2, 0)])
    if P.get("po", 0) == 0:
        last = poison(G, P.get("pom", mx), P.get("pos", 18))
        assert last < first[(2, 0)] - 4, (last, first[(2, 0)])
    PF = P.get("pf", 31)
    fs = lines(f"""s_lshr_b32 s76, s2, 3
    s_lshl2_add_u32 s76, s76, s{sw}
    v_lshrrev_b32 v{t0}, 2, v{vl}
    v_and_b32 v{t0}, 3, v{t0}
    v_mul_u32_u24 v{t0}, 9216, v{t0}
    v_and_b32 v{t1}, 3, v{vl}
    v_lshl_add_u32 v{t0}, v{t1}, 7, v{t0}
    s_add_u32 s77, s76, 16
    s_mul_i32 s77, s77, {4*9216}
    s_mul_i32 s78, s{sk}, 1152
    s_add_u32 s77, s77, s78
    v_min_u32 v{t1}, 4, v{vl}
    v_mul_u32_u24 v{t1}, 1152, v{t1}
    s_mul_i32 s78, s{sk}, 576
    s_mul_i32 s76, s76, 5
    s_add_u32 s78, s78, s76
    s_mul_i32 s78, s78, 1152""")
    lastq = G.place(lastxa + 1, fs)
    fs = []
    if PF & 4: fs += [V(f"buffer_load_dword v{HD}, v{t0}, s[{sWg}:{sWg+3}], s77 offen offset:640", "pf"), V(f"buffer_load_dword v{HD+1}, v{t0}, s[{sWu}:{sWu+3}], s77 offen offset:1664", "pf")]
    if PF & 8: fs += [V(f"buffer_load_dword v{HD+2}, v{t1}, s[{sWd}:{sWd+3}], s78 offen offset:1024", "pf")]
    lastq = G.seq(max(lastq + 1, lastxs + 1, P.get("pfm", 0)), fs, sep=SEP, step=P.get("pfs", 16))
    tcount = [0]
    def epi_main(p, kk, t):
        fs = []
        if p == 0:
            tmp = TMP + 4 * (tcount[0] % 4); tcount[0] += 1
        else: tmp = XV + 16 * kk + 4 * t
        for hh in range(2):
            g = ACC + 16 * (2 * kk + hh) + 4 * t; u = g + 64
            for e in range(4): fs.append(f"v_mul_f32 v{g+e}, v{g+e}, v{u+e}")
            fs.append(f"v_cvt_pk_bf16_f32 v{tmp+2*hh}, v{g}, v{g+1}")
            fs.append(f"v_cvt_pk_bf16_f32 v{tmp+2*hh+1}, v{g+2}, v{g+3}")
        fs.append(V(f"buffer_store_dwordx4 v[{tmp}:{tmp+3}], v{vX4 if kk else vX}, {WS}, s{sHo+8*p} offen offset:{t*1024}{sc}", ("h", p)))
        return fs
    def epi2():
        fs = []
        for tp in range(2):
            tmp = TMP + 4 * (tcount[0] % 4); tcount[0] += 1
            for hh in range(2):
                g = ACC2 + 4 * (2 * tp + hh); u = g + 16
                for e in range(4): fs.append(f"v_mul_f32 v{g+e}, v{g+e}, v{u+e}")
                fs.append(f"v_cvt_pk_bf16_f32 v{tmp+2*hh}, v{g}, v{g+1}")
                fs.append(f"v_cvt_pk_bf16_f32 v{tmp+2*hh+1}, v{g+2}, v{g+3}")
            fs.append("s_nop 1")
            fs.append(f"v_permlane32_swap_b32 v{tmp}, v{tmp+2}")
            fs.append(f"v_permlane32_swap_b32 v{tmp+1}, v{tmp+3}")
            fs.append("s_nop 0")
            fs.append(V(f"buffer_store_dwordx4 v[{tmp}:{tmp+3}], v{vH2}, {WS}, s{sHo+4} offen offset:{tp*2048}{sc}", ("h", 2)))
        return fs
    last = G.seq(first[(2, 0)] + 4, sum([epi_main(0, kk, t) for kk in range(2) for t in range(4)], []), sep=SEP, step=P.get("h0s", 16))
    assert last < first[(1, 18)] - 4, (last, first[(1, 18)])
    lastf2 = G.seq(first[(2, 0)] + P.get("f2", 60), [lambda: st.wait(vm="xts"), flag_st("s15")], sep=SEP)
    f1 = lambda q: first[(1, 18 + q)]
    last2 = G.seq(f1(0) + 8, epi2(), sep=SEP)
    T8B = 73728; RA, RB = 0, 90112; YB = T8B
    assert P2B + 3 * CV_XS + 32 <= T8B and T8B + 18432 <= CVB
    fs = lines(f"""v_lshrrev_b32 v{t0}, 1, v{vl}
    v_and_b32 v{t1}, 7, v{t0}
    v_bfe_u32 v{t2}, v{t0}, 3, 1
    v_lshl_add_u32 v{t1}, v{t2}, 4, v{t1}
    v_bfe_u32 v{t2}, v{t0}, 4, 1
    v_lshl_add_u32 v{t1}, v{t2}, 3, v{t1}
    s_cmp_lt_u32 s{sw}, 2@s_cselect_b64 vcc, -1, 0
    v_cndmask_b32 v{t1}, v{t0}, v{t1}, vcc
    s_and_b32 s78, s{sw}, 1
    s_mul_i32 s78, s78, {32*1152}
    s_lshl_b32 s79, s{sC}, 5
    s_add_u32 s78, s78, s79
    s_add_u32 s78, s78, 1024
    v_and_b32 v{t2}, 1, v{vl}
    v_lshl_add_u32 v{t2}, v{t2}, 4, s78
    v_mul_u32_u24 v{t0}, 1152, v{t0}
    v_mul_u32_u24 v{t1}, 1152, v{t1}
    v_add_u32 v{vW0}, v{t0}, v{t2}
    v_add_u32 v{vW2}, v{t1}, v{t2}""")
    lastv = last = G.place(max(lastf2, lastq) + 1, fs)
    fs = []
    for i in range(5):
        fs.append(f"s_cmp_lt_u32 s{sw}, 2\ns_cselect_b32 s78, s{sWo+2*i}, " + (f"s{sWo+2*i+1}" if i < 4 else f"s{sWo+7}"))
        m0 = f"s_add_u32 m0, s{sM1}, {T8B + i*4096}" if i < 4 else f"s_add_u32 m0, s79, {T8B + 3*4096}"
        if i == 4: fs.append(f"s_cmp_lt_u32 s{sw}, 2\ns_cselect_b32 s79, 4096, 0"); fs.append(f"s_add_u32 s79, s79, s{sM1}")
        fs.append(V(f"buffer_load_dwordx4 v{vW2 if i == 2 else vW0}, s[{sWd}:{sWd+3}], s78 offen lds", "wd8", m0))
    last = G.seq(max(last + 1, barpos[20] + 1), fs, sep=SEP, step=P.get("t8s", 16))
    lastt8 = last
    print('wd8 ends at', last, file=sys.stderr)
    fs = lines(f"""s_lshr_b32 s14, s2, 4
    s_lshr_b32 s15, s2, 5
    s_add_u32 s15, s15, 16
    s_cmp_lt_u32 s2, 64@s_cselect_b32 s15, s15, s14
    s_sub_u32 s15, s15, s14
    s_lshl_b32 s15, s15, 12
    s_lshl_b32 s14, s14, 12
    s_add_u32 s14, s14, {F2}
    v_lshrrev_b32 v{t0}, 5, v{vl}
    v_mul_lo_u32 v{t0}, v{t0}, s15
    v_and_b32 v{t1}, 31, v{vl}
    v_lshl_add_u32 v{vPa}, v{t1}, 7, v{t0}""")
    last = G.place(lastv + 1, fs)
    last = G.seq(max(last + 1, f1(0) + P.get("p2", 60)), [V(poll_ld("s14"), "p2")], sep=SEP)
    fs = lines(f"""s_mul_i32 s15, s2, {2*XT_STR}
    s_lshl_b32 s81, s{sw}, 1
    s_add_u32 s81, s81, {XT_OFF+128}
    s_mul_i32 s82, s2, {XT_STR}
    s_add_u32 s82, s82, {512*XT_STR}
    s_cmp_lt_u32 s2, 64@s_cselect_b32 s82, s82, {OOB}
    s_add_u32 s82, s82, s81
    s_add_u32 s15, s15, s81
    s_add_u32 s80, s15, {XT_STR}
    s_mul_i32 s81, s{sw}, {CV_XS}
    s_mul_i32 s{sXo}, s{sCh}, {XT_STR}
    s_add_u32 s{sXo}, s{sXo}, {XT_OFF}
    v_and_b32 v{t1}, 6, v{vl}
    v_and_b32 v{t0}, 1, v{vl}
    v_lshl_add_u32 v{t1}, v{t0}, 4, v{t1}""")
    last = G.place(last + 1, fs)
    last = G.place(max(last + 1, f1(0) + P.get("p2c", 140)), [lambda: st.wait(vm="p2")] + check([poll_ld("s14")], poll_t))
    last = G.seq(last + 1, [V(f"buffer_load_dwordx4 v[{HD}:{HD+3}], v{t1}, {WS}, s{sXo} offen offset:96{sc}", "cvh")], sep=SEP)
    mt = last + 1
    a_off = [f"s_lshl_b32 s12, s2, 2", f"s_add_u32 s12, s12, s{sw}", "s_lshl_b32 s12, s12, 7", f"s_add_u32 s13, s12, {FB}", f"s_add_u32 s12, s12, {FA}"]
    lastfa = G.seq(max(last2 + 1, f1(P.get("fa", 4))), a_off + [lambda: st.wait(vm=("h", 2)), flag_st("s12")], sep=SEP)
    fs = []
    for i in range(4):
        for b, so in ((0, "s15"), (1, "s82"), (2, "s80")):
            fs.append(V(f"buffer_load_dwordx4 v{vX}, {WS}, {so} offen offset:{i*1024}{sc} lds", "cv", f"s_add_u32 m0, s81, {CVB + b*CV_LDS + 32}"))
    lastcv = G.seq(last + 1, fs, sep=SEP, step=P.get("cvs", 10))
    print("conv loads end at", lastcv, "barrier", barpos[34], file=sys.stderr)
    vR = TMP
    vXO = TMP + 7; vXO8 = TMP + 8; vI8 = TMP + 9; vYr = TMP + 10; vYr8 = TMP + 11; vYs = TMP + 12; vYs8 = TMP + 13
    vA, vB, vY, vHd = TMP + 10, TMP + 11, TMP + 12, TMP + 13
    XR = [vTR, vTR + 2, HD, HD + 2]; X8 = TMP + 14
    fs = lines(f"""v_lshrrev_b32 v{t0}, 2, v{vl}
    v_and_b32 v{t1}, 3, v{vl}
    v_lshlrev_b32 v{t1}, 3, v{t1}
    v_lshl_add_u32 v{t0}, v{t0}, 7, v{t1}
    v_bfe_u32 v{t1}, v{vl}, 3, 2
    v_lshl_add_u32 v{t0}, v{t1}, 5, v{t0}
    s_andn2_b32 s76, 3, s{sk}
    s_lshl_b32 s76, s76, 5
    v_xor_b32 v{vR}, s76, v{t0}
    v_xor_b32 v{vR+2}, 32, v{vR}
    v_xor_b32 v{vR+4}, 64, v{vR}
    v_add_u32 v{vR+1}, 65536, v{vR}
    v_add_u32 v{vR+3}, 65536, v{vR+2}
    v_add_u32 v{vR+5}, 65536, v{vR+4}
    v_lshlrev_b32 v{t0}, 3, v{vl}
    v_add_u32 v{vR+6}, {T8B}, v{t0}
    s_mul_i32 s76, s{sw}, {CV_LDS}
    s_add_u32 s76, s76, {CVB - CV_LDS}
    v_bfe_u32 v{t0}, v{vl}, 1, 2
    v_mul_u32_u24 v{t0}, {CV_XS}, v{t0}
    v_and_b32 v{t1}, 1, v{vl}
    v_lshl_add_u32 v{t0}, v{t1}, 4, v{t0}
    s_cmp_eq_u32 s{sw}, 0@s_cselect_b32 s77, {P2B}, s76
    v_add_u32 v{vHd}, s77, v{t0}
    v_and_b32 v{t1}, 15, v{vl}
    v_lshrrev_b32 v{t2}, 4, v{vl}
    v_mul_u32_u24 v{vXO}, 1152, v{t1}
    v_lshl_add_u32 v{vXO}, v{t2}, 3, v{vXO}
    v_lshlrev_b32 v{vY}, 5, v{t1}
    v_lshlrev_b32 v{vB}, 4, v{t2}
    v_sub_u32 v{vB}, v{vB}, v{vY}
    v_lshrrev_b32 v{t0}, 1, v{t2}
    v_lshl_add_u32 v{vY}, v{t0}, 4, v{vY}
    v_and_b32 v{t0}, 1, v{t2}
    v_lshl_add_u32 v{vY}, v{t0}, 9, v{vY}
    s_add_u32 s77, s76, {CV_KR+480}
    v_add_u32 v{vB}, s77, v{vB}
    v_add_u32 v{t1}, 1, v{t1}
    v_and_b32 v{vA}, 3, v{t1}
    v_mul_u32_u24 v{vA}, {CV_XS}, v{vA}
    v_lshrrev_b32 v{t1}, 2, v{t1}
    v_lshl_add_u32 v{vA}, v{t1}, 3, v{vA}
    v_lshl_add_u32 v{vA}, v{t2}, 4, v{vA}
    v_add_u32 v{vA}, s76, v{vA}
    v_and_b32 v{t1}, 3, v{vl}
    v_lshl_add_u32 v{t0}, v{t0}, 4, v{t1}
    v_mul_u32_u24 v{vXO8}, 1152, v{t0}
    v_bfe_u32 v{t0}, v{vl}, 2, 2
    v_lshl_add_u32 v{vXO8}, v{t0}, 3, v{vXO8}
    v_lshrrev_b32 v{t3}, 5, v{vl}
    v_lshl_add_u32 v{vXO8}, v{t3}, 30, v{vXO8}
    v_lshlrev_b32 v{t1}, 4, v{t1}
    v_lshl_add_u32 v{t1}, v{t0}, 8, v{t1}
    v_lshl_add_u32 v{vI8}, v{t2}, 10, v{t1}
    s_and_b32 s14, s2, 0x3f
    v_and_b32 v{t1}, 3, v{vl}
    v_lshl_add_u32 v{t1}, v{t1}, 6, s14
    v_lshl_add_u32 v{t1}, v{t1}, 2, s{sw}
    v_lshlrev_b32 v{vPa}, 7, v{t1}
    s_mov_b32 s14, {FA}""")
    last = G.place(mt, fs)
    last = G.seq(max(last + 1, f1(0) + P.get("pa", 270)), [V(poll_ld("s14"), "pa")], sep=SEP)
    lastpa = last
    fs = lines(f"""s_lshl_b32 s76, s{sC}, 7
    s_lshl_b32 s43, s{sk}, 4
    s_lshl4_add_u32 s77, s{sC}, 512
    s_add_u32 s76, s76, s43
    s_lshl_b32 s78, s{stt}, 3
    s_add_u32 s78, s78, s{sk}
    s_lshl_b32 s40, s76, 12
    s_lshl_b32 s43, s{sg}, 7
    s_add_u32 s40, s40, s43
    s_add_u32 s40, s40, {YT_OFF}
    s_add_u32 s41, s40, {8*4096 - 1024}
    s_lshl_b32 s42, s77, 12
    s_lshl_b32 s43, s78, 6
    s_add_u32 s42, s42, s43
    s_add_u32 s42, s42, {YT_OFF - 2048}
    s_mul_i32 s44, s{sg}, {64*1152}
    s_lshl_b32 s43, s76, 1
    s_add_u32 s44, s44, s43
    s_add_u32 s45, s44, {16*1152}
    s_add_u32 s46, s44, {32*1152}
    s_add_u32 s47, s44, {48*1152}
    s_lshl_b32 s48, s78, 3
    s_add_u32 s48, s48, s{sw}
    s_mul_i32 s48, s48, {4*1152}
    s_lshl_b32 s43, s77, 1
    s_add_u32 s48, s48, s43
    s_and_b32 s49, s{sPo}, 0xffff0000
    s_lshl_b32 s43, s{sw}, 6
    s_add_u32 s49, s49, s43
    s_cmp_lt_u32 s{sCh}, 576@s_cselect_b32 s51, 0, {OOB}
    s_lshl_b32 s43, s{sCh}, 12
    s_add_u32 s43, s43, s51
    s_add_u32 s43, s43, {YT_OFF}
    s_lshl_b32 s50, s{sCh}, 7
    s_add_u32 s50, s50, s51
    s_add_u32 s50, s50, {F4}
    s_mov_b32 s51, 0xffff0000
    s_and_b32 s80, s{sk}, 4
    s_lshl_b32 s80, s80, 6
    s_sub_u32 s80, 128, s80
    v_add_u32 v{vW0}, s80, v{vD0}
    v_add_u32 v{vW2}, s80, v{vD1}
    s_lshl_b32 s80, s{sw}, 1
    s_lshr_b32 s80, 0xd8, s80
    s_and_b32 s80, s80, 3
    s_lshl_b32 s80, s80, 10""")
    sblk = fs
    last = G.place(max(lastpa + 1, f1(0) + P.get("pac", 340)), [lambda: st.wait(vm=["pa", "cvh"])] + check([poll_ld("s14")], poll_t) +
                   [lambda: st.lds(f"ds_write_b128 v{vHd}, v[{HD}:{HD+3}]", "cvw")])
    CA = 0; AFb = (128, 32); BFb = (64, 96)
    def rdA(rho, S):
        r = AFb[rho & 1] + 4 * S; off = 64 * (8 * S + rho)
        return [lambda: st.lds(f"ds_read_b64 v[{r}:{r+1}], v{vA} offset:{off}", ("A", rho, S)),
                lambda: st.lds(f"ds_read_b64 v[{r+2}:{r+3}], v{vA} offset:{off+8}", ("A", rho, S))]
    def rdB(rho, u):
        r = BFb[rho & 1] + 4 * u; off = 64 * (rho - 8 * u + 56)
        return [lambda: st.lds(f"ds_read_b128 v[{r}:{r+3}], v{vB} offset:{off}", ("B", rho, u))]
    G.place(barpos[34] + 2, sum([rdA(0, S) for S in range(8)], []), step=1)
    fs = []
    for t in range(4):
        e = epi_main(1, 0, t)
        fs += e[:4] + rdB(0, t) + e[4:10] + rdB(0, t + 4) + e[10:]
    laste = G.seq(NM - 32 + 1, fs, sep=SEP)
    print("g1 fillers end at", laste, file=sys.stderr)
    def hload(s): return [V(f"buffer_load_dwordx4 {xreg(s,t)}, v{vX4 if s & 1 else vX}, {WS}, s{sHo+(s>>1)} offen offset:{t*1024}{sc}", ("hl", s)) for t in range(4)]
    NH1 = P.get("nh1", 10)
    assert lastfa < lastcv
    if PF & 16:
        fs = lines(f"""s_lshr_b32 s79, s2, 3
        s_lshl2_add_u32 s79, s79, s{sw}
        s_lshl_b32 s82, s{sk}, 7
        s_add_u32 s79, s79, s82
        s_mul_i32 s79, s79, 5184
        s_and_b32 s79, s79, -128
        v_min_u32 v{t1}, 40, v{vl}
        v_lshlrev_b32 v{t1}, 7, v{t1}""")
        m = G.place(max(lastcv, lastt8, lastpa) + 1, fs)
        m = G.pv(max(m + 1, P.get("pfd", 1230)), V(f"buffer_load_dword v{t2}, v{t1}, s[{sWd}:{sWd+3}], s79 offen", "pf"), SEP)
        for i in range(1, P.get("pfw", 3)): G.vp[m + SEP * i] = 99
    G.seq(max(lastcv + 1, f1(4)), hload(0) + hload(1), sep=SEP, step=P.get("hstep", 5))
    for s_ in range(2, NH1): last = G.seq(max(last + (P.get("hstep", 5) if s_ > 2 else 1), f1(s_ + 3)), hload(s_), sep=SEP, step=P.get("hstep", 5))
    assert G.place(max(lastt8 + 1, lastpa + 1, lastcv + 1, barpos[28] + 1), sblk) < NM - 40
    print("h loads end at", last, "of", NM, file=sys.stderr)
    if P.get("po", 0) == 1:
        last = poison(G, P.get("pom", f1(3)), P.get("pos", 40))
        assert last < barpos[34] - 4
    def mk(i):
        def f():
            if not FINE: stamp(a, i)
        return f
    G.add_pre(first[(2, 0)], mk(3), cost=0)
    fine(G, 1)
    G.emit()
    mk(4)()
    a(f"s_cmp_ge_u32 s{sCh}, 576"); a("s_cbranch_scc1 L_idle")
    AC = 32; PK = 80; RH = (96, 128); IN8 = 0; A8 = 8; SS = 12; S8 = 16; Y8 = 20; YP = 128
    early = list(range(10)) + [16, 17]; lates = list(range(10, 16))
    areg = {s: vR + 2 * ((7 - s) % 3) for s in range(8)}
    accof = {8: 32, 7: 48, 6: 64, 5: 96, 4: 32, 3: 48, 2: 64, 1: 32, 0: 48}
    fr = []
    for grp in (early, lates):
        for s_ in grp: fr += [(8, s_), (7, s_)]
        for s_ in grp: fr.append((6, s_))
        for s_ in grp: fr.append((5, s_))
    for s in range(4, -1, -1):
        for s_ in range(18): fr.append((s, s_))
    def rd2(j):
        s, s_ = fr[j]; w = WR + 4 * (j % NW)
        if s == 8: ad, off, u = vR + 6, s_ * 1024, 512
        else: ad, off, u = areg[s] + (s_ >> 4), (s_ & 15) * 4096, 2048
        return [lambda: st.lds(f"ds_read_b64_tr_b16 v[{w}:{w+1}], v{ad} offset:{off}", ("g", j)),
                lambda: st.lds(f"ds_read_b64_tr_b16 v[{w+2}:{w+3}], v{ad} offset:{off+u}", ("g", j))]
    def ypair(i):
        o = YP + 4 * i; fs = []
        for T in (2 * i, 2 * i + 1):
            c = CA + 4 * T
            fs += [f"v_cvt_pk_bf16_f32 v{o+2*(T&1)}, v{c}, v{c+1}", f"v_cvt_pk_bf16_f32 v{o+2*(T&1)+1}, v{c+2}, v{c+3}"]
        fs += ["s_nop 0", f"v_permlane16_swap_b32 v{o}, v{o+2}", f"v_permlane16_swap_b32 v{o+1}, v{o+3}", "s_nop 0",
               V(f"buffer_store_dwordx4 v[{o}:{o+3}], v{vY}, {WS}, s43 offen offset:{i*1024}{sc}", "yst")]
        return fs
    mid = sum([hload(s) for s in range(NH1, 10)], [])
    xres = [V(f"buffer_load_dwordx2 v[{XR[t]}:{XR[t]+1}], v{vXO}, s[{sX}:{sX+3}], s{44+t} offen", "xr") for t in range(4)]
    xres.append(V(f"buffer_load_dwordx2 v[{X8}:{X8+1}], v{vXO8}, s[{sX}:{sX+3}], s48 offen", "xr"))
    late = sum([hload(s) for s in lates], [])
    if P.get("xin", 1): mid += xres; xres = []
    pubB = [lambda: st.wait(vm=("h", 1)), flag_st("s13")]
    NA = P.get("na", 9)
    def wd_dma(region, v2, ph, tag):
        return [V(f"buffer_load_dwordx4 v{v2[h]}, s[{sWd}:{sWd+3}], s{sWo+p} offen lds", tag, f"s_add_u32 m0, s{80 if p == 4 else sM1}, {region + p*8192 + h*4096}") for p, h in ph]
    wdA = wd_dma(RA, (vW0, vW2), [(p, h) for p in range(NA) for h in range(2)], "wdA")
    snap = (list(st.vm), st.vm_done, list(st.lg), st.lg_done)
    pairs = sorted([(S, u) for S in range(8) for u in range(8 - S)], key=lambda p: (max(p), p))
    def reads(rho):
        fs = []
        for i in range(8): fs += rdA(rho, i) + rdB(rho, i)
        return fs
    G = G2(st)
    seen = set()
    for rho in range(8):
        for (S, u) in (pairs if rho < 7 else sorted(pairs, key=lambda p: (p[0] + p[1], p))):
            T = S + u; c = CA + 4 * T
            src = f"v[{c}:{c+3}]" if T in seen else "0"
            seen.add(T)
            ra = AFb[rho & 1] + 4 * S; rb = BFb[rho & 1] + 4 * u
            m = G.mfma(f"v_mfma_f32_16x16x32_bf16 v[{c}:{c+3}], v[{ra}:{ra+3}], v[{rb}:{rb+3}], {src}")
            G.add_pre(m, lambda rho=rho, S=S, u=u: st.wait(lg=[("A", rho, S), ("B", rho, u)]), cost=0)
    fs = []
    for t in range(4): fs += epi_main(1, 1, t) + rdA(1, t) + rdB(1, t)
    for t in range(4, 8): fs += rdA(1, t) + rdB(1, t)
    last = G.seq(0, fs, sep=2)
    print("conv head ends at", last, file=sys.stderr)
    for rho in range(1, 7): G.place(36 * rho + 8, reads(rho + 1), cap=1)
    G.seq(P.get("fb", 110), pubB, sep=SEP)
    B2 = P.get("b2", 262)
    last = G.seq(last + 1, wdA, sep=SEP, step=P.get("astep", 8))
    print("wdA ends at", last, file=sys.stderr)
    last = G.seq(last + 1, mid, sep=SEP, step=P.get("mstep", 14))
    print("mid loads end at", last, file=sys.stderr)
    assert last < B2
    def bar_b2():
        st.wait(vm=["wd8", "wdA"], lg=("B", 7, 7)); a("s_barrier"); G.rec = []
    G.add_pre(B2, bar_b2, cost=2)
    G.place(40, [f"s_mov_b32 s14, {FB}"])
    G.pv(max(B2, P.get("pb", 0)), V(poll_ld("s14"), "pb"), SEP)
    for i, m in enumerate((2, 9, 20)): m = G.seq(252 + m + 3, ypair(i), sep=SEP)
    G.place(max(B2, 276), sum([rd2(j) for j in range(D)], []), step=1)
    fine(G, 2)
    G.emit()
    a("s_branch L_g2")
    rec = G.rec; tailsep = 288 - m
    snap2 = (list(st.vm), st.vm_done, list(st.lg), st.lg_done)
    a("L_idle:")
    st.vm, st.vm_done, st.lg, st.lg_done = snap
    for t in range(4): run(epi_main(1, 1, t))
    def fs4(i):
        if FINE and P["ph"] == 4: a(f"s_memrealtime s[{86+2*i}:{87+2*i}]")
    a(f"s_mov_b32 s14, {FB}")
    n0 = P.get("n0", 0)
    fs4(0); run(wdA[:n0]); fs4(1); run(pubB); fs4(2); run(wdA[n0:]); fs4(3)
    if NA < 9:
        a(f"s_cmp_lg_u32 s{sw}, 0"); a("s_cbranch_scc1 L_idle2")
        for op in range(8):
            a(f"v_add_u32 v{t0}, {8*op*1152}, v{vW0}")
            sw_ = (op & 4) | ((op & 1) << 1) | ((op >> 1) & 1)
            run([V(f"buffer_load_dwordx4 v{t0}, s[{sWd}:{sWd+3}], s{sWo+p} offen lds", "wd", f"s_mov_b32 m0, {RA + p*8192 + (sw_ if p == 4 else op)*1024}") for p in range(NA, 9)])
    a("L_idle2:")
    run(mid); fs4(4)
    if FINE and P["ph"] == 4: a("s_waitcnt vmcnt(0)"); fs4(5)
    a("s_waitcnt vmcnt(0) lgkmcnt(0)"); a("s_barrier")
    for j in range(D): run(rd2(j))
    run(rec)
    st.vm, st.vm_done, st.lg, st.lg_done = snap2
    assert st.lg[-2 * D:] == [("g", j >> 1) for j in range(2 * D)]
    a("L_g2:")
    mk(5)()
    G = G2(st); G.vp[-tailsep] = 99
    started = {0}; T_ = {}
    for j, (s, s_) in enumerate(fr):
        w = WR + 4 * (j % NW)
        for t in range(4):
            c = accof[s] + 4 * t
            src = f"v[{c}:{c+3}]" if s in started else "0"
            m = G.mfma(f"v_mfma_f32_16x16x32_bf16 v[{c}:{c+3}], v[{w}:{w+3}], {xreg(s_,t)}, {src}")
            if t == 0: G.add_pre(m, lambda j=j, s=s, s_=s_: st.wait(vm=("hl", s_) if (s == 8 and s_ < 16) else None, lg=("g", j)))
        started.add(s); T_[s] = m + 1
    def bar2(tag):
        def f():
            st.wait(vm=tag); a("s_barrier")
        return f
    for j in range(len(fr) - D):
        s, s_ = fr[j + D]
        if s_ == 0 and s == 3: G.add_pre(4 * j, bar2("wdD"), cost=2)
        r = rd2(j + D)
        G.add_gap(4 * j, r[0]); G.add_gap(4 * j + 1, r[1])
    B3 = P.get("b3", 186)
    assert B3 >= 96
    G.add_pre(B3, "s_barrier")
    for s in range(4, -1, -1):
        r = areg[s]
        G.place(T_[s + 3], [f"v_xor_b32 v{r}, {((s ^ (s + 3)) & 3) << 5}, v{r}"] + ([f"v_add_u32 v{r}, {RB}, v{r}"] if 1 <= s <= 3 else []) + [f"v_add_u32 v{r+1}, 65536, v{r}"])
    lasty = G.seq(2, ypair(3), sep=2)
    lastb = G.place(max(lasty + 1, P.get("pbc", 30)), [lambda: st.wait(vm="pb")] + check([poll_ld("s14")], poll_t))
    G.seq(P.get("f4", 100), [lambda: st.wait(vm="yst"), flag_st("s50")], sep=SEP)
    lastl = G.seq(lastb + 1, late, sep=SEP, step=P.get("lstep", 5))
    print("late loads end at", lastl, file=sys.stderr)
    wdB = wd_dma(RB, (vD0, vD1), [(p, h) for p in range(8, -1, -1) for h in (1, 0)], "wdD")
    nb = P.get("nb", 3)
    if nb: assert G.seq(lasty + 1, wdB[:nb], sep=SEP, step=5) < lastb + 4
    fs = lines(f"""s_mul_i32 s12, s{sw}, 3072
    s_add_u32 s12, s12, {YB}
    v_lshrrev_b32 v{t0}, 2, v{vl}
    v_and_b32 v{t1}, 3, v{vl}
    v_lshl_add_u32 v{t2}, v{t1}, 3, s12
    v_lshl_add_u32 v{vYr}, v{t0}, 7, v{t2}
    v_lshlrev_b32 v{t2}, 4, v{t1}
    v_lshl_add_u32 v{vYs8}, v{t0}, 12, v{t2}
    v_and_b32 v{t2}, 3, v{t0}
    v_lshl_add_u32 v{t3}, v{t1}, 2, v{t2}
    s_lshl_b32 s81, s{sw}, 3
    s_add_u32 s81, s81, s12
    v_lshl_add_u32 v{vYr8}, v{t3}, 6, s81
    v_bfe_u32 v{t3}, v{vl}, 4, 1
    v_lshl_add_u32 v{vYr8}, v{t3}, 5, v{vYr8}
    v_lshlrev_b32 v{t1}, 4, v{t1}
    v_mov_b32 v{SS+2}, 0x3f80
    v_mov_b32 v{SS+3}, 0
    v_lshlrev_b64 v[{SS+2}:{SS+3}], v{t1}, v[{SS+2}:{SS+3}]
    v_cmp_eq_u32 vcc, 0, v{t2}@s_nop 1@v_cndmask_b32 v{S8}, 0, v{SS+2}, vcc
    v_cndmask_b32 v{S8+1}, 0, v{SS+3}, vcc
    v_cmp_eq_u32 vcc, 1, v{t2}@s_nop 1@v_cndmask_b32 v{S8+2}, 0, v{SS+2}, vcc
    v_cndmask_b32 v{S8+3}, 0, v{SS+3}, vcc
    v_lshrrev_b32 v{t1}, 4, v{vl}
    v_cmp_eq_u32 vcc, v{t1}, v{t2}@s_nop 1@v_cndmask_b32 v{SS}, 0, v{SS+2}, vcc
    v_cndmask_b32 v{SS+1}, 0, v{SS+3}, vcc
    v_mov_b32 v{SS+2}, v{SS}
    v_mov_b32 v{SS+3}, v{SS+1}
    v_lshrrev_b32 v{t0}, 3, v{vl}
    v_and_b32 v{t1}, 7, v{vl}
    v_lshlrev_b32 v{t1}, 4, v{t1}
    v_lshl_add_u32 v{vYs}, v{t0}, 12, v{t1}
    s_sub_u32 s81, s77, s76
    s_sub_u32 s81, s81, 16
    v_mul_lo_u32 v{t0}, v{t3}, s81
    v_and_b32 v{t1}, 31, v{vl}
    v_add_lshl_u32 v{vPa}, v{t0}, v{t1}, 7
    s_lshl_b32 s14, s76, 7
    s_add_u32 s14, s14, {F4}
    s_add_u32 s13, s13, {FP - FB}
    v_and_b32 v{t0}, 7, v{vl}
    s_and_b32 s81, s2, 0xf8
    v_add_u32 v{t0}, s81, v{t0}
    s_lshr_b32 s81, s{sk}, 1
    v_lshl_add_u32 v{t2}, v{t0}, 2, s81
    v_lshl_add_u32 v{t0}, v{t0}, 2, s{sw}
    s_mov_b64 vcc, 0xff00
    v_cndmask_b32 v{t0}, v{t0}, v{t2}, vcc
    v_lshlrev_b32 v{t3}, 7, v{t0}""")
    last = G.place(lastb + 1, fs)
    if P.get("po", 0) == 2:
        last = poison(G, max(last + 1, P.get("pom", 110)), P.get("pos", 10), PO=24)
    pk = [0]
    def epi(s):
        fs = []; acc = accof[s]
        if s == 8: fs.append(f"s_add_u32 s82, s{sP8}, 65536")
        else: fs.append(f"s_xor_b32 s82, s{sPo}, {(s<<16)|(s<<13)}")
        for h in range(2):
            o = PK + 4 * (pk[0] % 4); pk[0] += 1
            for i in range(4):
                ii = i ^ 2 if s in (6, 4, 2) else i
                fs.append(f"v_cvt_pk_bf16_f32 v{o+i}, v{acc+8*h+2*ii}, v{acc+8*h+2*ii+1}")
            if s <= NPO: fs.append(f"v_min_u32 v{o}, -2, v{o}")
            if s == 8: fs.append(pst(o, "s82" if h else f"s{sP8}", 0, ("ps", s)))
            else: fs.append(pst(o, "s82", 1024 * h, ("ps", s)))
        return fs
    def inreg(s, h): return RH[h] + 2 + 4 * (7 - s)
    def pso(s): return 51 + s if s <= NPO else 56 + (s & 1)
    def pld(s): return [f"buffer_load_dwordx4 v[{inreg(s,h)}:{inreg(s,h)+3}], v{vX}, {WS}, s{pso(s)} offen offset:{1024*h}{sc}" for h in range(2)]
    def pload(s): return [f"s_xor_b32 s{pso(s)}, s{sPo}, {s<<13}"] + [V(l, ("pl", s)) for l in pld(s)]
    def pchk(ss):
        rs = [inreg(s, h) for s in ss for h in range(2)]
        t = [f"v_max_u32 v{t0}, v{rs[0]}, v{rs[1]}"] + [f"v_max3_u32 v{t0}, v{t0}, v{rs[i]}, v{rs[i+1]}" for i in range(2, len(rs), 2)]
        return [lambda: st.wait(vm=[("pl", s) for s in ss])] + check(sum([pld(s) for s in ss], []), t + [f"v_cmp_eq_u32 vcc, -1, v{t0}"])
    def unpk(dst, src): return [f"v_lshlrev_b32 v{dst}, 16, v{src}", f"v_and_b32 v{dst+1}, s51, v{src}"]
    E = P.get("E", 4)
    last = G.seq(T_[7], epi(8), sep=SEP)
    last = G.seq(last + 1, epi(7), sep=SEP)
    last = G.seq(max(last + 1, T_[6] + E), epi(6), sep=SEP)
    le = {}
    for s in range(5, 0, -1): le[s] = G.seq(T_[s] + E, epi(s), sep=SEP)
    last = G.seq(lastl + 1, wdB[nb:], sep=SEP, step=P.get("dstep", 6))
    assert last > B3
    G.seq(max(last + 1, P.get("xr", 0)), xres, sep=SEP, step=P.get("xrs", 10))
    print("wdD ends at", last, T_, file=sys.stderr)
    G.seq(P.get("p4", 312), [V(poll_ld("s14"), "p4")], sep=SEP)
    last = G.place(P.get("p4c", 376), [lambda: st.wait(vm="p4")] + check([poll_ld("s14")], poll_t) + [f"v_mov_b32 v{vPa}, v{t3}", f"s_mov_b32 s14, {FP}"])
    G.seq(P.get("fp", 350), [lambda: st.wait(vm=("ps", NPO + 1)), flag_st("s13")], sep=SEP)
    last = G.seq(last + 1, [V(f"buffer_load_dwordx4 v{vYs}, {WS}, s40 offen{sc} lds", "yl", "s_mov_b32 m0, s12"),
        V(f"buffer_load_dwordx4 v{vYs}, {WS}, s41 offen offset:1024{sc} lds", "yl", "s_mov_b32 m0, s12"),
        V(f"buffer_load_dwordx4 v{vYs8}, {WS}, s42 offen offset:2048{sc} lds", "yl", "s_mov_b32 m0, s12")], sep=SEP, step=6)
    assert last < P.get("pp", 480)
    last = G.place(le[3] + 1, [lambda: st.wait(vm="xr")] + sum([unpk(accof[0] + 4 * t + 2 * i, XR[t] + i) for t in range(4) for i in range(2)], []) +
                   unpk(A8, X8) + unpk(A8 + 2, X8 + 1))
    G.seq(P.get("pp", 480), [V(poll_ld("s14"), "pp")], sep=SEP)
    fs = [lambda: st.wait(vm="yl")]
    fs += [lambda t=t: st.lds(f"ds_read_b64_tr_b16 v[{RH[t>>1]+30*(t&1)}:{RH[t>>1]+30*(t&1)+1}], v{vYr} offset:{32*t}", "yr") for t in range(4)]
    fs += [lambda: st.lds(f"ds_read_b64_tr_b16 v[{Y8}:{Y8+1}], v{vYr8} offset:2048", "yr")]
    last = G.place(max(last + 1, P.get("yr", 490)), fs, step=1)
    last = G.place(last + 10, [lambda: st.wait(lg="yr")] + unpk(Y8 + 2, Y8) + unpk(Y8 + 4, Y8 + 1) + [f"v_add_f32 v{A8+i}, v{A8+i}, v{Y8+2+i}" for i in range(4)])
    last = G.place(max(last + 1, P.get("ppc", 545)), [lambda: st.wait(vm="pp")] + check([poll_ld("s14")], poll_t))
    assert last < T_[1] - 4
    fs = [f"s_add_u32 s50, s49, 4096"] + [V(f"buffer_load_dwordx4 v[{IN8+4*i}:{IN8+4*i+3}], v{vI8}, {WS}, s{49+i} offen{sc}", "p8") for i in range(2)]
    for s in range(7, 1, -1): fs += pload(s)
    last = G.seq(last + 1, fs, sep=SEP, step=P.get("pstep", 5))
    last = G.seq(max(last + 1, T_[0] - P.get("l1", 6)), pload(1), sep=2)
    print("g2 fillers end at", last, "of", len(G.mf), file=sys.stderr)
    fine(G, 3)
    G.emit()
    mk(6)()
    def summ(i):
        for h in range(2):
            c = accof[0] + 8 * h + 4 * (i & 1); r = RH[h] + 4 * i
            a(f"v_mfma_f32_16x16x32_bf16 v[{c}:{c+3}], v[{SS}:{SS+3}], v[{r}:{r+3}], v[{c}:{c+3}]")
    st.wait(vm="p8")
    for i in range(2): a(f"v_mfma_f32_16x16x32_bf16 v[{A8}:{A8+3}], v[{S8}:{S8+3}], v[{IN8+4*i}:{IN8+4*i+3}], v[{A8}:{A8+3}]")
    st.wait(vm=("pl", 5))
    for i in range(3): summ(i)
    a(f"v_cvt_pk_bf16_f32 v{Y8}, v{A8}, v{A8+1}"); a(f"v_cvt_pk_bf16_f32 v{Y8+1}, v{A8+2}, v{A8+3}")
    osc = ("", " sc1", " nt", " sc0 sc1")[P.get("osc", 0)]
    run(pchk((4, 3, 2)))
    for i in range(3, 6): summ(i)
    run(pchk((1,)))
    for i in range(6, 8): summ(i)
    st.vmem(f"buffer_store_dwordx2 v[{Y8}:{Y8+1}], v{vXO8}, s[{sO}:{sO+3}], s48 offen{osc}", "o")
    for n_, t in enumerate((0, 2, 1, 3)):
        o = PK + 2 * t; c = accof[0] + 4 * t
        a(f"s_nop {(4, 0, 0, 0)[n_]}")
        a(f"v_cvt_pk_bf16_f32 v{o}, v{c}, v{c+1}"); a(f"v_cvt_pk_bf16_f32 v{o+1}, v{c+2}, v{c+3}")
        st.vmem(f"buffer_store_dwordx2 v[{o}:{o+1}], v{vXO}, s[{sO}:{sO+3}], s{44+t} offen{osc}", "o")
    if STAMP[0]:
        a("s_waitcnt vmcnt(0)"); stamp(a, 7)
        if "probe" in P:
            i = P["probe"]
            a(f"v_readfirstlane_b32 s76, v{vTok}"); a("s_waitcnt lgkmcnt(0)")
            a(f"s_sub_u32 s77, s{84+2*i}, s76" if i >= 0 else "s_mov_b32 s77, 0")
            a("s_add_u32 s77, s77, 6000")
            a("L_probe:"); a("s_sleep 2"); a("s_memrealtime s[78:79]"); a("s_waitcnt lgkmcnt(0)")
            a("s_sub_u32 s78, s78, s76"); a("s_cmp_lt_i32 s78, s77"); a("s_cbranch_scc1 L_probe")
        else: stamp_flush(a, 0, 8, sw)
    a("L_end:")
    a("s_endpgm")
    a("L_pref:")
    PF = P.get("pf", 31)
    a(f"""
    s_lshr_b32 s80, s2, 3
    s_mul_i32 s82, s{sk}, 1152
    v_lshrrev_b32 v0, 2, v{vl}
    v_mul_u32_u24 v0, 9216, v0
    v_and_b32 v1, 3, v{vl}
    v_lshl_add_u32 v0, v1, 7, v0
    s_add_u32 s81, s80, 4
    s_mul_i32 s81, s81, {16*9216}
    s_add_u32 s81, s81, s82
    """)
    if PF & 1:
        a(f"buffer_load_dword v2, v0, s[{sWg}:{sWg+3}], s81 offen")
        a(f"buffer_load_dword v3, v0, s[{sWu}:{sWu+3}], s81 offen offset:1024")
    if PF & 2:
        a(f"""
        s_and_b32 s81, s80, 7
        s_add_u32 s81, s81, 32
        s_cmp_ge_u32 s81, 36
        s_cselect_b32 m0, 36, 0
        s_sub_u32 s81, s81, m0
        s_mul_i32 s81, s81, {16*9216}
        s_add_u32 s81, s81, s82
        s_cmp_ge_u32 s80, 24
        s_cbranch_scc1 L_kgdone
        s_cmp_ge_u32 s80, 16
        s_cbranch_scc1 L_pref2
        buffer_load_dword v4, v0, s[{sWg}:{sWg+3}], s81 offen offset:640
        s_branch L_kgdone
        L_pref2:
        buffer_load_dword v4, v0, s[{sWu}:{sWu+3}], s81 offen offset:1664
        """)
    a("s_branch L_kgdone")
    for (L, B, loads, test) in slow:
        a(f"{L}:")
        a("s_add_u32 s3, s3, 1"); a(f"s_cmp_gt_u32 s3, {TMO}"); a("s_cbranch_scc1 L_end2")
        run(loads); a("s_waitcnt vmcnt(0)"); run(test)
        a(f"s_cbranch_vccnz {L}"); a(f"s_branch {B}")
    a("L_end2:")
    a.end(n, 256, 256, 163840, vgpr=512, accum=256)

def build_text(hdr="", **kw):
    a = Asm(); k_fused(a, **kw)
    return a.text(hdr, single=True)

if __name__ == "__main__":
    if "stamp" in sys.argv: STAMP[0] = True
    kw = {}; P = {}
    for x in sys.argv[2:]:
        if "=" in x:
            k_, v_ = x.split("=");
            if k_ in ("RING", "NW", "XD", "xstep"): kw[k_] = int(v_)
            else: P[k_] = int(v_)
    open(sys.argv[1], "w").write(build_text(header(), P=P, **kw))
```

```python
from gen_conv import *
FL = 0x900000
F1 = FL; F2 = FL + 0x10000; FA = FL + 0x30000; FB = FL + 0x50000; F4 = FL + 0x70000; FP = FL + 0x90000
PB_OFF = 0x2200000
WS_SZ = 0x4000000
OOB = 0x40000000
TMO = 200000

class V:
    def __init__(self, txt, tag=None, m0=None): self.txt = txt; self.tag = tag; self.m0 = m0

class G2(Gaps):
    def __init__(self, st):
        super().__init__(st); self.vp = {}; self.rec = None
    def emitv(self, v):
        self.st.vmem(v.txt, v.tag)
        if self.rec is not None: self.rec.append(v)
    def pv(self, m, v, sep):
        g = m + 1 if v.m0 else m
        while not (self.cost.get(g, 0) < 2 and (not v.m0 or self.cost.get(g - 1, 0) < 2)
                   and all(abs(g - p) >= min(sep, q) for p, q in self.vp.items())): g += 1
        if v.m0: self.add_gap(g - 1, v.m0)
        self.add_gap(g, lambda: self.emitv(v)); self.vp[g] = 99
        return g
    def seq(self, m, fs, sep=5, step=0):
        nv = m
        for f in fs:
            if isinstance(f, V):
                m = self.pv(max(m, nv), f, sep); nv = m + step - (1 if f.m0 else 0)
            else: m = self.place(m, [f])
        return m

def k_fused(a, RING=7, NW=5, XD=3, xstep=6, P=None):
    P = dict(P or {})
    n = NAME + "_kernel"; a.begin(n); stamp(a, 0)
    sc = " sc1"
    sWg, sWu, sW2, sWS, sWd, sX, sO, sDbg = 4, 8, 12, 16, 20, 24, 28, 76
    sw, sk, stt, sC, sg, sM, sM1, sXo = 32, 33, 34, 35, 36, 37, 38, 39
    sKS, sHo, sWo, sCh, sPo, sP8 = 40, 58, 67, 83, 100, 101
    P2B = RING * 8192; CVB = 163840 - 3 * CV_LDS; LNB = P2B + 36864; YB = 36864
    assert LNB <= CVB
    ACC = 0; ACC2 = 128; XV = 160; WR = 192; HD = 212; TMP = 216
    vTR = 232; vTR2 = 236; vW0 = 237; vW1 = 238; vW2 = 239; vX = 240; vX4 = 241; vH2 = 242; vl = 243
    t0, t1, t2, t3 = 244, 245, 246, 247
    vTok = 248; vPl = 250; vL0 = 252; vPa = 253; vD0 = 254; vD1 = 255
    WS = f"s[{sWS}:{sWS+3}]"
    slow = []
    FINE = STAMP[0] and "ph" in P
    def fine(G, ph):
        if FINE and P["ph"] == ph:
            for i in range(6): G.add_pre(P["sb"] + i * P["ss"], f"{'s_memtime' if P.get('cyc') else 's_memrealtime'} s[{86+2*i}:{87+2*i}]", cost=0)
    def run(fs):
        for f in fs:
            if isinstance(f, str): a(f)
            elif isinstance(f, V):
                if f.m0: a(f.m0); a("s_nop 0")
                st.vmem(f.txt, f.tag)
            else: f()
    def lines(t): return [f.strip().replace("@", "\n") for f in t.split("\n") if f.strip()]
    def check(loads, test):
        L = a.label("slow"); B = a.label("back")
        slow.append((L, B, loads, test))
        return list(test) + [f"s_cbranch_vccnz {L}\n{B}:"]
    a(f"""
    s_cmp_ge_u32 s2, 256
    s_cbranch_scc1 L_end
    s_load_dwordx2 s[{sX}:{sX+1}], s[0:1], {OFF['x']}
    s_load_dwordx2 s[{sWS}:{sWS+1}], s[0:1], {OFF['ws']}
    s_load_dwordx2 s[{sWg}:{sWg+1}], s[0:1], {OFF['wg']}
    s_load_dwordx2 s[{sWu}:{sWu+1}], s[0:1], {OFF['wu']}
    s_load_dwordx2 s[{sWd}:{sWd+1}], s[0:1], {OFF['wd']}
    s_load_dwordx2 s[{sO}:{sO+1}], s[0:1], {OFF['out']}
    s_load_dwordx2 s[{sDbg}:{sDbg+1}], s[0:1], {OFF['dbg']}
    v_lshrrev_b32 v{t0}, 6, v0
    v_and_b32 v{vl}, 63, v0
    s_mov_b32 s3, 0
    v_readfirstlane_b32 s{sw}, v{t0}
    """)
    for d, sz in ((sX, X_SZ), (sWS, WS_SZ), (sWg, W_SZ), (sWu, W_SZ + 1024), (sWd, W_SZ), (sO, X_SZ), (sDbg, 256), (sW2, W_SZ)):
        a(f"s_mov_b32 s{d+2}, {sz}"); a(f"s_mov_b32 s{d+3}, 0x00020000")
    a(f"s_cmp_lg_u32 s{sw}, 0")
    a("s_cbranch_scc1 L_kg")

    def setup():
        a(f"""
        s_and_b32 s{sk}, s2, 7
        s_bfe_u32 s{stt}, s2, 0x30003
        s_lshr_b32 s{sC}, s2, 6
        s_lshl_b32 s{sg}, s{stt}, 2
        s_add_u32 s{sg}, s{sg}, s{sw}
        s_lshl_b32 s{sM}, s{sw}, 11
        s_lshl_b32 s{sM1}, s{sw}, 10
        s_and_b32 s{sHo}, s{sw}, 1
        s_cselect_b32 s{sW2}, s{sWu}, s{sWg}
        s_cselect_b32 s{sW2+1}, s{sWu+1}, s{sWg+1}
        s_sub_u32 s{sWu}, s{sWu}, 1024
        s_subb_u32 s{sWu+1}, s{sWu+1}, 0
        v_lshrrev_b32 v{t0}, 3, v{vl}
        v_and_b32 v{t1}, 3, v{t0}
        v_xor_b32 v{t1}, s{sHo}, v{t1}
        v_lshlrev_b32 v{t1}, 1, v{t1}
        v_and_b32 v{t2}, 7, v{vl}
        v_xor_b32 v{t1}, v{t1}, v{t2}
        v_mul_u32_u24 v{t0}, 9216, v{t0}
        v_lshl_add_u32 v{t0}, v{t1}, 4, v{t0}
        s_mul_i32 s{sHo+1}, s{sw}, {8*9216}
        s_mul_i32 s{sHo+2}, s{sk}, 1152
        s_lshl_b32 s{sHo+3}, s{sC}, 7
        s_add_u32 s{sHo+1}, s{sHo+1}, s{sHo+2}
        s_add_u32 s{sHo+1}, s{sHo+1}, s{sHo+3}
        v_add_u32 v{vW0}, s{sHo+1}, v{t0}
        v_add_u32 v{vW1}, 640, v{vW0}
        v_lshrrev_b32 v{t0}, 1, v{vl}
        v_and_b32 v{t1}, 19, v{t0}
        v_bfe_u32 v{t2}, v{t0}, 2, 1
        v_lshl_add_u32 v{t1}, v{t2}, 3, v{t1}
        v_bfe_u32 v{t2}, v{t0}, 3, 1
        v_lshl_add_u32 v{t1}, v{t2}, 2, v{t1}
        v_mul_u32_u24 v{t1}, 9216, v{t1}
        v_and_b32 v{t2}, 1, v{vl}
        v_lshl_add_u32 v{t1}, v{t2}, 4, v{t1}
        s_lshr_b32 s{sHo+1}, s{sw}, 1
        s_mul_i32 s{sHo+1}, s{sHo+1}, 294912
        s_add_u32 s{sHo+1}, s{sHo+1}, s{sHo+2}
        s_lshl_b32 s{sHo+3}, s{sC}, 5
        s_add_u32 s{sHo+1}, s{sHo+1}, s{sHo+3}
        s_add_u32 s{sHo+1}, s{sHo+1}, 512
        v_add_u32 v{vW2}, s{sHo+1}, v{t1}
        """)
        for k in range(18): a(f"s_mov_b32 s{sKS+k}, {k*294912}")
    def setup2():
        a(f"""
        s_mul_i32 s{sXo}, s{sg}, 73728
        v_lshlrev_b32 v{vX}, 4, v{vl}
        v_add_u32 v{vX4}, 4096, v{vX}
        v_lshrrev_b32 v{t0}, 4, v{vl}
        v_bfe_u32 v{t1}, v{vl}, 2, 2
        v_and_b32 v{t2}, 3, v{vl}
        v_lshlrev_b32 v{t2}, 3, v{t2}
        v_lshl_add_u32 v{t3}, v{t1}, 7, v{t2}
        v_lshl_add_u32 v{t3}, v{t0}, 11, v{t3}
        v_lshl_add_u32 v{vTR2}, v{t1}, 5, v{t2}
        v_and_b32 v{t2}, 1, v{t0}
        v_lshl_add_u32 v{vTR2}, v{t2}, 7, v{vTR2}
        v_xor_b32 v{t1}, v{t1}, v{t2}
        v_lshrrev_b32 v{t0}, 1, v{t0}
        v_lshl_add_u32 v{vTR2}, v{t0}, 9, v{vTR2}
        v_add_u32 v{vTR2}, {P2B}, v{vTR2}
        """)
        for t in range(4):
            a(f"v_xor_b32 v{t0}, {t}, v{t1}")
            a(f"v_lshl_add_u32 v{vTR+t}, v{t0}, 5, v{t3}")
        a(f"s_mul_i32 s{sPo}, s{sk}, {32*73728}")
        a(f"s_add_u32 s{sPo}, s{sPo}, s{sXo}")
        a(f"s_add_u32 s{sPo}, s{sPo}, {HF_OFF}")
        a(f"s_mul_i32 s{sP8}, s{sk}, {576*1152}")
        for p in range(9):
            if p == 4: a(f"s_mov_b32 s{sWo+p}, 4")
            elif p < 4: a(f"s_xor_b32 s{sWo+p}, s{sC}, {p}")
            else:
                a(f"s_xor_b32 s{sWo+p}, s{sC}, {8-p}"); a(f"s_add_u32 s{sWo+p}, s{sWo+p}, 5")
            a(f"s_lshl_b32 s{sHo+p}, s{sWo+p}, 13")
            a(f"s_add_u32 s{sHo+p}, s{sHo+p}, s{sPo}")
            a(f"s_mul_i32 s{sWo+p}, s{sWo+p}, {64*1152}")
            a(f"s_add_u32 s{sWo+p}, s{sWo+p}, s{sP8}")
        a(f"""
        s_lshr_b32 s{sPo}, s{sC}, 1
        s_lshl_b32 s{sPo}, s{sPo}, 12
        s_and_b32 s{sP8}, s{sC}, 1
        s_lshl_b32 s{sP8}, s{sP8}, 9
        s_add_u32 s{sPo}, s{sPo}, s{sP8}
        v_lshrrev_b32 v{t0}, 5, v{vl}
        v_lshlrev_b32 v{t0}, 9, v{t0}
        v_add3_u32 v{vH2}, v{vX}, v{t0}, s{sPo}
        s_lshl_b32 s{sP8}, s{stt}, 2
        s_add_u32 s{sP8}, s{sP8}, s{sC}
        s_lshl_b32 s{sP8}, s{sP8}, 19
        s_add_u32 s{sP8}, s{sP8}, {PB_OFF}
        s_lshl_b32 s{sPo}, s{sk}, 16
        s_add_u32 s{sPo}, s{sPo}, s{sM}
        s_add_u32 s{sPo}, s{sPo}, s{sP8}
        s_lshl_b32 m0, s{sw}, 17
        s_add_u32 s{sP8}, s{sP8}, m0
        s_lshl_b32 m0, s{sk}, 10
        s_add_u32 s{sP8}, s{sP8}, m0
        v_min_u32 v{vL0}, 1, v{vl}
        v_lshlrev_b32 v{vL0}, 30, v{vL0}
        v_and_b32 v{vPa}, 7, v{vl}
        v_lshlrev_b32 v{vPa}, 7, v{vPa}
        """)
        a(f"""
        v_lshrrev_b32 v{t0}, 4, v{vl}
        v_lshlrev_b32 v{t0}, 1, v{t0}
        v_and_b32 v{t1}, 7, v{vl}
        v_xor_b32 v{t0}, v{t0}, v{t1}
        s_lshr_b32 m0, s{sk}, 2
        s_lshl1_add_u32 m0, s{sC}, m0
        s_lshl_b32 m0, m0, 7
        v_lshl_add_u32 v{t0}, v{t0}, 4, m0
        v_lshrrev_b32 v{t1}, 3, v{vl}
        s_lshl_b32 m0, s{sw}, 3
        v_add_u32 v{t2}, m0, v{t1}
        v_mul_u32_u24 v{vD0}, 1152, v{t2}
        v_add_u32 v{vD0}, v{vD0}, v{t0}
        v_add_u32 v{vD1}, {32*1152}, v{vD0}
        """)
    tok_ld = f"buffer_load_dwordx2 v[{vTok}:{vTok+1}], off, s[{sDbg}:{sDbg+3}], 0{sc}"
    tok_t = [f"v_cmp_eq_u32 vcc, 0, v{vTok}"]
    def flag_st(so): return V(f"buffer_store_dwordx2 v[{vTok}:{vTok+1}], v{vL0}, {WS}, {so} offen{sc}")
    def poll_ld(so): return f"buffer_load_dwordx2 v[{vPl}:{vPl+1}], v{vPa}, {WS}, {so} offen{sc}"
    poll_t = [f"v_cmp_ne_u64 vcc, v[{vPl}:{vPl+1}], v[{vTok}:{vTok+1}]"]

    a("s_waitcnt lgkmcnt(0)")
    st = St(a)
    def ln_hook():
        setup(); setup2(); a(f"s_mov_b32 s{sCh}, 1024")
    ln_wave(st, 2, sX, sWS, None, vl, LNB, sc=sc, sT=80, after_ld=ln_hook)
    a(tok_ld)
    a(f"s_lshl_b32 s80, s2, 7"); a(f"s_add_u32 s80, s80, {F1}")
    a("s_waitcnt vmcnt(0)")
    run(check([tok_ld], tok_t))
    run([flag_st("s80")])
    a("s_branch L_join")
    a("L_kg:")
    for i, k in enumerate(("lar", "aim", "cre", "cim", "ldt", "dsk")):
        a(f"s_load_dwordx2 s[{52+4*i}:{53+4*i}], s[0:1], {OFF[k]}")
    a(f"s_memrealtime s[{sPo}:{sPo+1}]")
    a(f"""
    s_lshl_b32 s{sCh}, s2, 1
    s_lshr_b32 s80, s{sw}, 1
    s_add_u32 s{sCh}, s{sCh}, s80
    s_add_u32 s80, s2, 512
    s_cmp_eq_u32 s{sw}, 2
    s_cselect_b32 s{sCh}, s80, s{sCh}
    """)
    for i in range(6):
        a(f"s_mov_b32 s{54+4*i}, {576 * 256 if i < 4 else 1152}"); a(f"s_mov_b32 s{55+4*i}, 0x00020000")
    a(f"""
    s_waitcnt lgkmcnt(0)
    s_cmp_lg_u32 s{sCh}, 0
    s_cbranch_scc1 L_notok
    s_or_b32 s{sPo}, s{sPo}, 1
    v_mov_b32 v{vTok}, s{sPo}
    v_mov_b32 v{vTok+1}, s{sPo+1}
    buffer_store_dwordx2 v[{vTok}:{vTok+1}], off, s[{sDbg}:{sDbg+3}], 0{sc}
    L_notok:
    """)
    st = St(a)
    kpos = list(range(18)) + [16, 17] + list(range(16))
    def dma_stage(pos, v=None, dm=0, one=False):
        ks = kpos[pos]; m0 = f"s_add_u32 m0, s{sM}, {(pos % RING)*8192+dm}"
        if v is None: v = vW1 if pos >= 18 else vW0
        return [V(f"buffer_load_dwordx4 v{v}, s[{sWg}:{sWg+3}], s{sKS+ks} offen lds", ("w", pos), m0),
                V(f"buffer_load_dwordx4 v{v}, s[{sWu}:{sWu+3}], s{sKS+ks} offen offset:1024 lds", ("w", pos), None if one else m0)]
    def dma_p2(nn, v=None, dm=0):
        return [V(f"buffer_load_dwordx4 v{v or vW2}, s[{sW2}:{sW2+3}], s{sKS+2*nn} offen lds", ("w2", nn), f"s_add_u32 m0, s{sM1}, {P2B + nn*4096+dm}")]
    def kg_hook():
        setup()
        for k in range(RING - 1): run(dma_stage(k, one=True))
        for k in range(9): run(dma_p2(k))
        keep = list(st.vm)
        a(f"s_cmp_lg_u32 s{sw}, 2"); a("s_cbranch_scc1 L_now0")
        a(f"v_subrev_u32 v{t0}, {16*9216}, v{vW0}"); a(f"v_subrev_u32 v{t1}, 294912, v{vW2}")
        for k in range(RING - 1): run(dma_stage(k, t0, -4096, True))
        for k in range(9): run(dma_p2(k, t1, -2048))
        nw2 = len(st.vm) - 6
        a("L_now0:")
        st.vm = keep
        setup2()
        a(f"s_mul_i32 s{sW2}, s{sw}, {CV_LDS}")
        a(f"s_add_u32 s{sW2+1}, s{sW2}, {CVB - CV_LDS + CV_KR}")
        a(f"s_add_u32 s{sW2}, s{sW2}, {CVB - CV_LDS + CV_KR - KG_LDS}")
        a(f"s_cmp_ge_u32 s{sCh}, 576"); a("s_cbranch_scc1 L_pref")
        a(f"s_waitcnt vmcnt({nw2})")
        a(f"s_cmp_eq_u32 s{sw}, 2"); a("s_cbranch_scc1 L_par")
        st.wait(vm="kg5")
        a("L_par:")
    assert LNB + 8 * 1344 <= CVB + CV_KR - KG_LDS
    top = kgen_wave(st, sCh, 52, None, vl, sW2, sT=80, sKL=sW2 + 1, after_ld=kg_hook)
    assert top <= 232, top
    a("L_kgdone:")
    a(tok_ld)
    a("L_join:")
    if not FINE: stamp(a, 1)
    a(f"s_lshl_b32 s80, s{sg}, 10"); a(f"s_add_u32 s80, s80, {F1}")
    a(poll_ld("s80"))
    a("s_waitcnt vmcnt(0) lgkmcnt(0)")
    run(check([tok_ld], tok_t))
    run(check([poll_ld("s80")], poll_t))

    st = St(a)
    SEP = P.get("sep", 4)
    def xreg(ks, t):
        return f"a[{16*ks+4*t}:{16*ks+4*t+3}]" if ks < 16 else f"v[{XV+16*(ks-16)+4*t}:{XV+16*(ks-16)+4*t+3}]"
    def xload(ks):
        fs = [V(f"buffer_load_dwordx4 {xreg(ks,t)}, v{vX4 if ks & 1 else vX}, {WS}, s{sXo} offen offset:{t*1024}{sc}", ("x", ks, t)) for t in range(4)]
        if ks & 1: fs.append(f"s_add_u32 s{sXo}, s{sXo}, 8192")
        return fs
    for k in range(XD): run(xload(k))
    a("s_barrier")
    if not FINE: stamp(a, 2)
    G = G2(st)
    frags = []
    for q in range(18):
        for i in range(8): frags.append((0, q, i))
    for q in range(18):
        for i in range(2): frags.append((2, q, i))
    for q in range(18, 34):
        for i in range(8): frags.append((1, q, i))
    for kk in range(2):
        for q in (34, 35):
            for i in range(4): frags.append((1, q, 4 * kk + i))
    def rd(j):
        p, q, i = frags[j]; w = WR + 4 * (j % NW)
        if p == 2:
            ad = vTR2; off = q * 2048 + i * 1024; hs = 256
        else:
            ad = vTR + (i >> 1); off = (q % RING) * 8192 + (i & 1) * 1024; hs = 512
        return [lambda: st.lds(f"ds_read_b64_tr_b16 v[{w}:{w+1}], v{ad} offset:{off}", ("f", j)),
                lambda: st.lds(f"ds_read_b64_tr_b16 v[{w+2}:{w+3}], v{ad} offset:{off+hs}", ("f", j))]
    def accreg(p, i, t):
        if p == 2: return ACC2 + 16 * i + 4 * t
        return ACC + 16 * ((i >> 1) + 4 * (i & 1)) + 4 * t
    D = NW - 1
    first = {}
    for j, (p, q, i) in enumerate(frags):
        w = WR + 4 * (j % NW); ks = kpos[q]
        for t in range(4):
            c = accreg(p, i, t)
            src = "0" if q in (0, 18) else f"v[{c}:{c+3}]"
            m = G.mfma(f"v_mfma_f32_16x16x32_bf16 v[{c}:{c+3}], v[{w}:{w+3}], {xreg(ks,t)}, {src}")
            if t == 0:
                first.setdefault((p, q), m)
                if p == 0 and i == 0:
                    G.add_pre(m, lambda j=j, ks=ks: st.wait(vm=("x", ks, 3 if ks else 0), lg=("f", j)))
                else:
                    G.add_pre(m, lambda j=j: st.wait(lg=("f", j)))
            elif p == 0 and i == 0 and ks == 0:
                G.add_pre(m, lambda t=t: st.wait(vm=("x", 0, t)))
    NM = len(G.mf)
    BS = P.get("bs", 2)
    LA = RING - 1 - BS
    def bar(q):
        def f():
            tags = [("w", x) for x in range(q, q + (2 if q == 34 else BS)) if x >= RING - 1]
            if q == 34: tags.append("cv")
            if tags: st.wait(vm=tags)
            a("s_barrier")
        return f
    for j in range(D): run(rd(j))
    barpos = {}
    for j in range(len(frags) - D):
        p, q, i = frags[j + D]
        if i == 0 and p != 2 and q % BS == 0 and q < 35:
            G.add_pre(4 * j, bar(q), cost=2)
            barpos[q] = 4 * j
        r = rd(j + D)
        G.add_gap(4 * j, r[0]); G.add_gap(4 * j + 1, r[1])
    G.add_pre(NM - 4, "s_barrier")
    for q in sorted(barpos):
        fs = []
        for x in range(q + LA, q + LA + BS):
            if x < 36: fs += dma_stage(x)
        if fs: G.seq(barpos[q] + 1, fs, sep=2, step=P.get("wstep", 8))
    m = 2
    for ks in range(XD, 18):
        last = G.seq(m, xload(ks), sep=P.get("xsep", 3), step=xstep)
        m = max(m + 4 * xstep, last + 1)
        assert last < first[(0, ks)] - 40
    mx = last + 2
    XTd = ACC2; vA = ACC2 + 16; vB = ACC2 + 17; vZ = ACC2 + 18; Z4 = ACC2 + 20; PO = ACC2 + 24
    fs = lines(f"""s_lshl_b32 s12, s{sC}, 3
    s_add_u32 s12, s12, s{sk}
    s_mul_i32 s13, s{sg}, 18
    s_add_u32 s13, s13, s12
    s_lshl_b32 s13, s13, 12
    s_mul_i32 s14, s12, {32*XT_STR}
    s_add_u32 s14, s14, {XT_OFF+96}
    s_lshl_b32 s15, s12, 5
    s_add_u32 s15, s15, s{sg}
    s_lshl_b32 s15, s15, 7
    s_add_u32 s15, s15, {F2}
    s_cmp_lt_u32 s12, 18@s_cselect_b32 s12, 0, {OOB}
    s_add_u32 s13, s13, s12
    s_add_u32 s14, s14, s12
    s_add_u32 s15, s15, s12
    s_cmp_eq_u32 s{sg}, 0@s_cselect_b32 s12, s14, {OOB}
    s_lshl_b32 s81, s{sg}, 7
    s_add_u32 s14, s14, s81
    v_lshrrev_b32 v{t0}, 5, v{vl}
    v_bfe_u32 v{t1}, v{vl}, 1, 1
    v_lshlrev_b32 v{t1}, 8, v{t1}
    v_lshl_add_u32 v{vA}, v{t0}, 10, v{t1}
    v_bfe_u32 v{t0}, v{vl}, 4, 1
    v_lshl_add_u32 v{vA}, v{t0}, 7, v{vA}
    v_bfe_u32 v{t0}, v{vl}, 2, 2
    v_lshl_add_u32 v{vA}, v{t0}, 4, v{vA}
    v_and_b32 v{t0}, 1, v{vl}
    v_lshl_add_u32 v{vA}, v{t0}, 3, v{vA}
    s_lshl_b32 s81, s{sw}, 12
    s_add_u32 s81, s81, {CVB}
    v_add_u32 v{vA}, s81, v{vA}
    v_lshrrev_b32 v{t1}, 1, v{vl}
    v_mul_u32_u24 v{t1}, {XT_STR}, v{t1}
    v_lshl_add_u32 v{vZ}, v{t0}, 4, v{t1}
    v_and_b32 v{t0}, 15, v{vl}
    v_mul_u32_u24 v{t0}, {XT_STR}, v{t0}
    v_and_b32 v{t1}, 48, v{vl}
    v_add_u32 v{vB}, v{t0}, v{t1}""")
    fs += [f"v_mov_b32 v{Z4+i}, 0" for i in range(4)]
    lastxa = last = G.place(10, fs, cap=2)
    last = G.seq(max(last + 1, mx), [V(f"buffer_load_dwordx4 v{vX}, {WS}, s13 offen offset:{t*1024}{sc} lds", "xtl", "s_mov_b32 m0, s81") for t in range(4)], sep=SEP, step=6)
    def pst(src, so, off, tag): return V(f"buffer_store_dwordx4 v[{src}:{src+3}], v{vX}, {WS}, {so} offen offset:{off}{sc}", tag)
    NPO = 4
    def poison(G, m, step, PO=PO):
        fs = [f"v_mov_b32 v{PO+i}, -1" for i in range(4)]
        for s in range(NPO, 0, -1): fs += [f"s_xor_b32 s79, s{sPo}, {(s<<16)|(s<<13)}", pst(PO, "s79", 0, "po"), pst(PO, "s79", 1024, "po")]
        return G.seq(m, fs, sep=SEP, step=step)
    fs = [lambda: st.wait(vm="xtl")]
    for hf in range(2):
        for th in range(2):
            for r in range(2):
                d = XTd + 8 * hf + 4 * th + 2 * r
                fs.append(lambda d=d, o=th*2048+hf*512+r*64, vA=vA: st.lds(f"ds_read_b64_tr_b16 v[{d}:{d+1}], v{vA} offset:{o}", "xtr"))
    last = G.place(last + P.get("xtw", 70), fs, step=1)
    fs = [lambda: st.wait(lg="xtr")]
    for hf in range(2):
        if hf: fs.append(f"s_add_u32 s14, s14, {16*XT_STR}")
        for th in range(2):
            d = XTd + 8 * hf + 4 * th
            fs.append(V(f"buffer_store_dwordx4 v[{d}:{d+3}], v{vB}, {WS}, s14 offen offset:{32+th*64}{sc}", "xts"))
    fs.append(V(f"buffer_store_dwordx4 v[{Z4}:{Z4+3}], v{vZ}, {WS}, s12 offen{sc}", "xts"))
    lastxs = last = G.seq(last + 8, fs, sep=SEP, step=P.get("xss", 10))
    assert last < first[(2, 0)] - 4, (last, first[(2, 0)])
    if P.get("po", 0) == 0:
        last = poison(G, P.get("pom", mx), P.get("pos", 18))
        assert last < first[(2, 0)] - 4, (last, first[(2, 0)])
    PF = P.get("pf", 31)
    fs = lines(f"""s_lshr_b32 s76, s2, 3
    s_lshl2_add_u32 s76, s76, s{sw}
    v_lshrrev_b32 v{t0}, 2, v{vl}
    v_and_b32 v{t0}, 3, v{t0}
    v_mul_u32_u24 v{t0}, 9216, v{t0}
    v_and_b32 v{t1}, 3, v{vl}
    v_lshl_add_u32 v{t0}, v{t1}, 7, v{t0}
    s_add_u32 s77, s76, 16
    s_mul_i32 s77, s77, {4*9216}
    s_mul_i32 s78, s{sk}, 1152
    s_add_u32 s77, s77, s78
    v_min_u32 v{t1}, 4, v{vl}
    v_mul_u32_u24 v{t1}, 1152, v{t1}
    s_mul_i32 s78, s{sk}, 576
    s_mul_i32 s76, s76, 5
    s_add_u32 s78, s78, s76
    s_mul_i32 s78, s78, 1152""")
    lastq = G.place(lastxa + 1, fs)
    fs = []
    if PF & 4: fs += [V(f"buffer_load_dword v{HD}, v{t0}, s[{sWg}:{sWg+3}], s77 offen offset:640", "pf"), V(f"buffer_load_dword v{HD+1}, v{t0}, s[{sWu}:{sWu+3}], s77 offen offset:1664", "pf")]
    if PF & 8: fs += [V(f"buffer_load_dword v{HD+2}, v{t1}, s[{sWd}:{sWd+3}], s78 offen offset:1024", "pf")]
    lastq = G.seq(max(lastq + 1, lastxs + 1, P.get("pfm", 0)), fs, sep=SEP, step=P.get("pfs", 16))
    tcount = [0]
    def epi_main(p, kk, t):
        fs = []
        if p == 0:
            tmp = TMP + 4 * (tcount[0] % 4); tcount[0] += 1
        else: tmp = XV + 16 * kk + 4 * t
        for hh in range(2):
            g = ACC + 16 * (2 * kk + hh) + 4 * t; u = g + 64
            for e in range(4): fs.append(f"v_mul_f32 v{g+e}, v{g+e}, v{u+e}")
            fs.append(f"v_cvt_pk_bf16_f32 v{tmp+2*hh}, v{g}, v{g+1}")
            fs.append(f"v_cvt_pk_bf16_f32 v{tmp+2*hh+1}, v{g+2}, v{g+3}")
        fs.append(V(f"buffer_store_dwordx4 v[{tmp}:{tmp+3}], v{vX4 if kk else vX}, {WS}, s{sHo+8*p} offen offset:{t*1024}{sc}", ("h", p)))
        return fs
    def epi2():
        fs = []
        for tp in range(2):
            tmp = TMP + 4 * (tcount[0] % 4); tcount[0] += 1
            for hh in range(2):
                g = ACC2 + 4 * (2 * tp + hh); u = g + 16
                for e in range(4): fs.append(f"v_mul_f32 v{g+e}, v{g+e}, v{u+e}")
                fs.append(f"v_cvt_pk_bf16_f32 v{tmp+2*hh}, v{g}, v{g+1}")
                fs.append(f"v_cvt_pk_bf16_f32 v{tmp+2*hh+1}, v{g+2}, v{g+3}")
            fs.append("s_nop 1")
            fs.append(f"v_permlane32_swap_b32 v{tmp}, v{tmp+2}")
            fs.append(f"v_permlane32_swap_b32 v{tmp+1}, v{tmp+3}")
            fs.append("s_nop 0")
            fs.append(V(f"buffer_store_dwordx4 v[{tmp}:{tmp+3}], v{vH2}, {WS}, s{sHo+4} offen offset:{tp*2048}{sc}", ("h", 2)))
        return fs
    last = G.seq(first[(2, 0)] + 4, sum([epi_main(0, kk, t) for kk in range(2) for t in range(4)], []), sep=SEP, step=P.get("h0s", 16))
    assert last < first[(1, 18)] - 4, (last, first[(1, 18)])
    lastf2 = G.seq(first[(2, 0)] + P.get("f2", 60), [lambda: st.wait(vm="xts"), flag_st("s15")], sep=SEP)
    f1 = lambda q: first[(1, 18 + q)]
    last2 = G.seq(f1(0) + 8, epi2(), sep=SEP)
    T8B = 73728; RA, RB = 0, 90112; YB = T8B
    assert P2B + 3 * CV_XS + 32 <= T8B and T8B + 18432 <= CVB
    fs = lines(f"""v_lshrrev_b32 v{t0}, 1, v{vl}
    v_and_b32 v{t1}, 7, v{t0}
    v_bfe_u32 v{t2}, v{t0}, 3, 1
    v_lshl_add_u32 v{t1}, v{t2}, 4, v{t1}
    v_bfe_u32 v{t2}, v{t0}, 4, 1
    v_lshl_add_u32 v{t1}, v{t2}, 3, v{t1}
    s_cmp_lt_u32 s{sw}, 2@s_cselect_b64 vcc, -1, 0
    v_cndmask_b32 v{t1}, v{t0}, v{t1}, vcc
    s_and_b32 s78, s{sw}, 1
    s_mul_i32 s78, s78, {32*1152}
    s_lshl_b32 s79, s{sC}, 5
    s_add_u32 s78, s78, s79
    s_add_u32 s78, s78, 1024
    v_and_b32 v{t2}, 1, v{vl}
    v_lshl_add_u32 v{t2}, v{t2}, 4, s78
    v_mul_u32_u24 v{t0}, 1152, v{t0}
    v_mul_u32_u24 v{t1}, 1152, v{t1}
    v_add_u32 v{vW0}, v{t0}, v{t2}
    v_add_u32 v{vW2}, v{t1}, v{t2}""")
    lastv = last = G.place(max(lastf2, lastq) + 1, fs)
    fs = []
    for i in range(5):
        fs.append(f"s_cmp_lt_u32 s{sw}, 2\ns_cselect_b32 s78, s{sWo+2*i}, " + (f"s{sWo+2*i+1}" if i < 4 else f"s{sWo+7}"))
        m0 = f"s_add_u32 m0, s{sM1}, {T8B + i*4096}" if i < 4 else f"s_add_u32 m0, s79, {T8B + 3*4096}"
        if i == 4: fs.append(f"s_cmp_lt_u32 s{sw}, 2\ns_cselect_b32 s79, 4096, 0"); fs.append(f"s_add_u32 s79, s79, s{sM1}")
        fs.append(V(f"buffer_load_dwordx4 v{vW2 if i == 2 else vW0}, s[{sWd}:{sWd+3}], s78 offen lds", "wd8", m0))
    last = G.seq(max(last + 1, barpos[20] + 1), fs, sep=SEP, step=P.get("t8s", 16))
    lastt8 = last
    print('wd8 ends at', last, file=sys.stderr)
    fs = lines(f"""s_lshr_b32 s14, s2, 4
    s_lshr_b32 s15, s2, 5
    s_add_u32 s15, s15, 16
    s_cmp_lt_u32 s2, 64@s_cselect_b32 s15, s15, s14
    s_sub_u32 s15, s15, s14
    s_lshl_b32 s15, s15, 12
    s_lshl_b32 s14, s14, 12
    s_add_u32 s14, s14, {F2}
    v_lshrrev_b32 v{t0}, 5, v{vl}
    v_mul_lo_u32 v{t0}, v{t0}, s15
    v_and_b32 v{t1}, 31, v{vl}
    v_lshl_add_u32 v{vPa}, v{t1}, 7, v{t0}""")
    last = G.place(lastv + 1, fs)
    last = G.seq(max(last + 1, f1(0) + P.get("p2", 60)), [V(poll_ld("s14"), "p2")], sep=SEP)
    fs = lines(f"""s_mul_i32 s15, s2, {2*XT_STR}
    s_lshl_b32 s81, s{sw}, 1
    s_add_u32 s81, s81, {XT_OFF+128}
    s_mul_i32 s82, s2, {XT_STR}
    s_add_u32 s82, s82, {512*XT_STR}
    s_cmp_lt_u32 s2, 64@s_cselect_b32 s82, s82, {OOB}
    s_add_u32 s82, s82, s81
    s_add_u32 s15, s15, s81
    s_add_u32 s80, s15, {XT_STR}
    s_mul_i32 s81, s{sw}, {CV_XS}
    s_mul_i32 s{sXo}, s{sCh}, {XT_STR}
    s_add_u32 s{sXo}, s{sXo}, {XT_OFF}
    v_and_b32 v{t1}, 6, v{vl}
    v_and_b32 v{t0}, 1, v{vl}
    v_lshl_add_u32 v{t1}, v{t0}, 4, v{t1}""")
    last = G.place(last + 1, fs)
    last = G.place(max(last + 1, f1(0) + P.get("p2c", 140)), [lambda: st.wait(vm="p2")] + check([poll_ld("s14")], poll_t))
    last = G.seq(last + 1, [V(f"buffer_load_dwordx4 v[{HD}:{HD+3}], v{t1}, {WS}, s{sXo} offen offset:96{sc}", "cvh")], sep=SEP)
    mt = last + 1
    a_off = [f"s_lshl_b32 s12, s2, 2", f"s_add_u32 s12, s12, s{sw}", "s_lshl_b32 s12, s12, 7", f"s_add_u32 s13, s12, {FB}", f"s_add_u32 s12, s12, {FA}"]
    lastfa = G.seq(max(last2 + 1, f1(P.get("fa", 4))), a_off + [lambda: st.wait(vm=("h", 2)), flag_st("s12")], sep=SEP)
    fs = []
    for i in range(4):
        for b, so in ((0, "s15"), (1, "s82"), (2, "s80")):
            fs.append(V(f"buffer_load_dwordx4 v{vX}, {WS}, {so} offen offset:{i*1024}{sc} lds", "cv", f"s_add_u32 m0, s81, {CVB + b*CV_LDS + 32}"))
    lastcv = G.seq(last + 1, fs, sep=SEP, step=P.get("cvs", 10))
    print("conv loads end at", lastcv, "barrier", barpos[34], file=sys.stderr)
    vR = TMP
    vXO = TMP + 7; vXO8 = TMP + 8; vI8 = TMP + 9; vYr = TMP + 10; vYr8 = TMP + 11; vYs = TMP + 12; vYs8 = TMP + 13
    vA, vB, vY, vHd = TMP + 10, TMP + 11, TMP + 12, TMP + 13
    XR = [vTR, vTR + 2, HD, HD + 2]; X8 = TMP + 14
    fs = lines(f"""v_lshrrev_b32 v{t0}, 2, v{vl}
    v_and_b32 v{t1}, 3, v{vl}
    v_lshlrev_b32 v{t1}, 3, v{t1}
    v_lshl_add_u32 v{t0}, v{t0}, 7, v{t1}
    v_bfe_u32 v{t1}, v{vl}, 3, 2
    v_lshl_add_u32 v{t0}, v{t1}, 5, v{t0}
    s_andn2_b32 s76, 3, s{sk}
    s_lshl_b32 s76, s76, 5
    v_xor_b32 v{vR}, s76, v{t0}
    v_xor_b32 v{vR+2}, 32, v{vR}
    v_xor_b32 v{vR+4}, 64, v{vR}
    v_add_u32 v{vR+1}, 65536, v{vR}
    v_add_u32 v{vR+3}, 65536, v{vR+2}
    v_add_u32 v{vR+5}, 65536, v{vR+4}
    v_lshlrev_b32 v{t0}, 3, v{vl}
    v_add_u32 v{vR+6}, {T8B}, v{t0}
    s_mul_i32 s76, s{sw}, {CV_LDS}
    s_add_u32 s76, s76, {CVB - CV_LDS}
    v_bfe_u32 v{t0}, v{vl}, 1, 2
    v_mul_u32_u24 v{t0}, {CV_XS}, v{t0}
    v_and_b32 v{t1}, 1, v{vl}
    v_lshl_add_u32 v{t0}, v{t1}, 4, v{t0}
    s_cmp_eq_u32 s{sw}, 0@s_cselect_b32 s77, {P2B}, s76
    v_add_u32 v{vHd}, s77, v{t0}
    v_and_b32 v{t1}, 15, v{vl}
    v_lshrrev_b32 v{t2}, 4, v{vl}
    v_mul_u32_u24 v{vXO}, 1152, v{t1}
    v_lshl_add_u32 v{vXO}, v{t2}, 3, v{vXO}
    v_lshlrev_b32 v{vY}, 5, v{t1}
    v_lshlrev_b32 v{vB}, 4, v{t2}
    v_sub_u32 v{vB}, v{vB}, v{vY}
    v_lshrrev_b32 v{t0}, 1, v{t2}
    v_lshl_add_u32 v{vY}, v{t0}, 4, v{vY}
    v_and_b32 v{t0}, 1, v{t2}
    v_lshl_add_u32 v{vY}, v{t0}, 9, v{vY}
    s_add_u32 s77, s76, {CV_KR+480}
    v_add_u32 v{vB}, s77, v{vB}
    v_add_u32 v{t1}, 1, v{t1}
    v_and_b32 v{vA}, 3, v{t1}
    v_mul_u32_u24 v{vA}, {CV_XS}, v{vA}
    v_lshrrev_b32 v{t1}, 2, v{t1}
    v_lshl_add_u32 v{vA}, v{t1}, 3, v{vA}
    v_lshl_add_u32 v{vA}, v{t2}, 4, v{vA}
    v_add_u32 v{vA}, s76, v{vA}
    v_and_b32 v{t1}, 3, v{vl}
    v_lshl_add_u32 v{t0}, v{t0}, 4, v{t1}
    v_mul_u32_u24 v{vXO8}, 1152, v{t0}
    v_bfe_u32 v{t0}, v{vl}, 2, 2
    v_lshl_add_u32 v{vXO8}, v{t0}, 3, v{vXO8}
    v_lshrrev_b32 v{t3}, 5, v{vl}
    v_lshl_add_u32 v{vXO8}, v{t3}, 30, v{vXO8}
    v_lshlrev_b32 v{t1}, 4, v{t1}
    v_lshl_add_u32 v{t1}, v{t0}, 8, v{t1}
    v_lshl_add_u32 v{vI8}, v{t2}, 10, v{t1}
    s_and_b32 s14, s2, 0x3f
    v_and_b32 v{t1}, 3, v{vl}
    v_lshl_add_u32 v{t1}, v{t1}, 6, s14
    v_lshl_add_u32 v{t1}, v{t1}, 2, s{sw}
    v_lshlrev_b32 v{vPa}, 7, v{t1}
    s_mov_b32 s14, {FA}""")
    last = G.place(mt, fs)
    last = G.seq(max(last + 1, f1(0) + P.get("pa", 270)), [V(poll_ld("s14"), "pa")], sep=SEP)
    lastpa = last
    fs = lines(f"""s_lshl_b32 s76, s{sC}, 7
    s_lshl_b32 s43, s{sk}, 4
    s_lshl4_add_u32 s77, s{sC}, 512
    s_add_u32 s76, s76, s43
    s_lshl_b32 s78, s{stt}, 3
    s_add_u32 s78, s78, s{sk}
    s_lshl_b32 s40, s76, 12
    s_lshl_b32 s43, s{sg}, 7
    s_add_u32 s40, s40, s43
    s_add_u32 s40, s40, {YT_OFF}
    s_add_u32 s41, s40, {8*4096 - 1024}
    s_lshl_b32 s42, s77, 12
    s_lshl_b32 s43, s78, 6
    s_add_u32 s42, s42, s43
    s_add_u32 s42, s42, {YT_OFF - 2048}
    s_mul_i32 s44, s{sg}, {64*1152}
    s_lshl_b32 s43, s76, 1
    s_add_u32 s44, s44, s43
    s_add_u32 s45, s44, {16*1152}
    s_add_u32 s46, s44, {32*1152}
    s_add_u32 s47, s44, {48*1152}
    s_lshl_b32 s48, s78, 3
    s_add_u32 s48, s48, s{sw}
    s_mul_i32 s48, s48, {4*1152}
    s_lshl_b32 s43, s77, 1
    s_add_u32 s48, s48, s43
    s_and_b32 s49, s{sPo}, 0xffff0000
    s_lshl_b32 s43, s{sw}, 6
    s_add_u32 s49, s49, s43
    s_cmp_lt_u32 s{sCh}, 576@s_cselect_b32 s51, 0, {OOB}
    s_lshl_b32 s43, s{sCh}, 12
    s_add_u32 s43, s43, s51
    s_add_u32 s43, s43, {YT_OFF}
    s_lshl_b32 s50, s{sCh}, 7
    s_add_u32 s50, s50, s51
    s_add_u32 s50, s50, {F4}
    s_mov_b32 s51, 0xffff0000
    s_and_b32 s80, s{sk}, 4
    s_lshl_b32 s80, s80, 6
    s_sub_u32 s80, 128, s80
    v_add_u32 v{vW0}, s80, v{vD0}
    v_add_u32 v{vW2}, s80, v{vD1}
    s_lshl_b32 s80, s{sw}, 1
    s_lshr_b32 s80, 0xd8, s80
    s_and_b32 s80, s80, 3
    s_lshl_b32 s80, s80, 10""")
    sblk = fs
    last = G.place(max(lastpa + 1, f1(0) + P.get("pac", 340)), [lambda: st.wait(vm=["pa", "cvh"])] + check([poll_ld("s14")], poll_t) +
                   [lambda: st.lds(f"ds_write_b128 v{vHd}, v[{HD}:{HD+3}]", "cvw")])
    CA = 0; AFb = (128, 32); BFb = (64, 96)
    def rdA(rho, S):
        r = AFb[rho & 1] + 4 * S; off = 64 * (8 * S + rho)
        return [lambda: st.lds(f"ds_read_b64 v[{r}:{r+1}], v{vA} offset:{off}", ("A", rho, S)),
                lambda: st.lds(f"ds_read_b64 v[{r+2}:{r+3}], v{vA} offset:{off+8}", ("A", rho, S))]
    def rdB(rho, u):
        r = BFb[rho & 1] + 4 * u; off = 64 * (rho - 8 * u + 56)
        return [lambda: st.lds(f"ds_read_b128 v[{r}:{r+3}], v{vB} offset:{off}", ("B", rho, u))]
    G.place(barpos[34] + 2, sum([rdA(0, S) for S in range(8)], []), step=1)
    fs = []
    for t in range(4):
        e = epi_main(1, 0, t)
        fs += e[:4] + rdB(0, t) + e[4:10] + rdB(0, t + 4) + e[10:]
    laste = G.seq(NM - 32 + 1, fs, sep=SEP)
    print("g1 fillers end at", laste, file=sys.stderr)
    def hload(s): return [V(f"buffer_load_dwordx4 {xreg(s,t)}, v{vX4 if s & 1 else vX}, {WS}, s{sHo+(s>>1)} offen offset:{t*1024}{sc}", ("hl", s)) for t in range(4)]
    NH1 = P.get("nh1", 10)
    assert lastfa < lastcv
    if PF & 16:
        fs = lines(f"""s_lshr_b32 s79, s2, 3
        s_lshl2_add_u32 s79, s79, s{sw}
        s_lshl_b32 s82, s{sk}, 7
        s_add_u32 s79, s79, s82
        s_mul_i32 s79, s79, 5184
        s_and_b32 s79, s79, -128
        v_min_u32 v{t1}, 40, v{vl}
        v_lshlrev_b32 v{t1}, 7, v{t1}""")
        m = G.place(max(lastcv, lastt8, lastpa) + 1, fs)
        m = G.pv(max(m + 1, P.get("pfd", 1230)), V(f"buffer_load_dword v{t2}, v{t1}, s[{sWd}:{sWd+3}], s79 offen", "pf"), SEP)
        for i in range(1, P.get("pfw", 3)): G.vp[m + SEP * i] = 99
    G.seq(max(lastcv + 1, f1(4)), hload(0) + hload(1), sep=SEP, step=P.get("hstep", 5))
    for s_ in range(2, NH1): last = G.seq(max(last + (P.get("hstep", 5) if s_ > 2 else 1), f1(s_ + 3)), hload(s_), sep=SEP, step=P.get("hstep", 5))
    assert G.place(max(lastt8 + 1, lastpa + 1, lastcv + 1, barpos[28] + 1), sblk) < NM - 40
    print("h loads end at", last, "of", NM, file=sys.stderr)
    if P.get("po", 0) == 1:
        last = poison(G, P.get("pom", f1(3)), P.get("pos", 40))
        assert last < barpos[34] - 4
    def mk(i):
        def f():
            if not FINE: stamp(a, i)
        return f
    G.add_pre(first[(2, 0)], mk(3), cost=0)
    fine(G, 1)
    G.emit()
    mk(4)()
    a(f"s_cmp_ge_u32 s{sCh}, 576"); a("s_cbranch_scc1 L_idle")
    AC = 32; PK = 80; RH = (96, 128); IN8 = 0; A8 = 8; SS = 12; S8 = 16; Y8 = 20; YP = 128
    early = list(range(10)) + [16, 17]; lates = list(range(10, 16))
    areg = {s: vR + 2 * ((7 - s) % 3) for s in range(8)}
    accof = {8: 32, 7: 48, 6: 64, 5: 96, 4: 32, 3: 48, 2: 64, 1: 32, 0: 48}
    fr = []
    for grp in (early, lates):
        for s_ in grp: fr += [(8, s_), (7, s_)]
        for s_ in grp: fr.append((6, s_))
        for s_ in grp: fr.append((5, s_))
    for s in range(4, -1, -1):
        for s_ in range(18): fr.append((s, s_))
    def rd2(j):
        s, s_ = fr[j]; w = WR + 4 * (j % NW)
        if s == 8: ad, off, u = vR + 6, s_ * 1024, 512
        else: ad, off, u = areg[s] + (s_ >> 4), (s_ & 15) * 4096, 2048
        return [lambda: st.lds(f"ds_read_b64_tr_b16 v[{w}:{w+1}], v{ad} offset:{off}", ("g", j)),
                lambda: st.lds(f"ds_read_b64_tr_b16 v[{w+2}:{w+3}], v{ad} offset:{off+u}", ("g", j))]
    def ypair(i):
        o = YP + 4 * i; fs = []
        for T in (2 * i, 2 * i + 1):
            c = CA + 4 * T
            fs += [f"v_cvt_pk_bf16_f32 v{o+2*(T&1)}, v{c}, v{c+1}", f"v_cvt_pk_bf16_f32 v{o+2*(T&1)+1}, v{c+2}, v{c+3}"]
        fs += ["s_nop 0", f"v_permlane16_swap_b32 v{o}, v{o+2}", f"v_permlane16_swap_b32 v{o+1}, v{o+3}", "s_nop 0",
               V(f"buffer_store_dwordx4 v[{o}:{o+3}], v{vY}, {WS}, s43 offen offset:{i*1024}{sc}", "yst")]
        return fs
    mid = sum([hload(s) for s in range(NH1, 10)], [])
    xres = [V(f"buffer_load_dwordx2 v[{XR[t]}:{XR[t]+1}], v{vXO}, s[{sX}:{sX+3}], s{44+t} offen", "xr") for t in range(4)]
    xres.append(V(f"buffer_load_dwordx2 v[{X8}:{X8+1}], v{vXO8}, s[{sX}:{sX+3}], s48 offen", "xr"))
    late = sum([hload(s) for s in lates], [])
    if P.get("xin", 1): mid += xres; xres = []
    pubB = [lambda: st.wait(vm=("h", 1)), flag_st("s13")]
    NA = P.get("na", 9)
    def wd_dma(region, v2, ph, tag):
        return [V(f"buffer_load_dwordx4 v{v2[h]}, s[{sWd}:{sWd+3}], s{sWo+p} offen lds", tag, f"s_add_u32 m0, s{80 if p == 4 else sM1}, {region + p*8192 + h*4096}") for p, h in ph]
    wdA = wd_dma(RA, (vW0, vW2), [(p, h) for p in range(NA) for h in range(2)], "wdA")
    snap = (list(st.vm), st.vm_done, list(st.lg), st.lg_done)
    pairs = sorted([(S, u) for S in range(8) for u in range(8 - S)], key=lambda p: (max(p), p))
    def reads(rho):
        fs = []
        for i in range(8): fs += rdA(rho, i) + rdB(rho, i)
        return fs
    G = G2(st)
    seen = set()
    for rho in range(8):
        for (S, u) in (pairs if rho < 7 else sorted(pairs, key=lambda p: (p[0] + p[1], p))):
            T = S + u; c = CA + 4 * T
            src = f"v[{c}:{c+3}]" if T in seen else "0"
            seen.add(T)
            ra = AFb[rho & 1] + 4 * S; rb = BFb[rho & 1] + 4 * u
            m = G.mfma(f"v_mfma_f32_16x16x32_bf16 v[{c}:{c+3}], v[{ra}:{ra+3}], v[{rb}:{rb+3}], {src}")
            G.add_pre(m, lambda rho=rho, S=S, u=u: st.wait(lg=[("A", rho, S), ("B", rho, u)]), cost=0)
    fs = []
    for t in range(4): fs += epi_main(1, 1, t) + rdA(1, t) + rdB(1, t)
    for t in range(4, 8): fs += rdA(1, t) + rdB(1, t)
    last = G.seq(0, fs, sep=2)
    print("conv head ends at", last, file=sys.stderr)
    for rho in range(1, 7): G.place(36 * rho + 8, reads(rho + 1), cap=1)
    G.seq(P.get("fb", 110), pubB, sep=SEP)
    B2 = P.get("b2", 262)
    last = G.seq(last + 1, wdA, sep=SEP, step=P.get("astep", 8))
    print("wdA ends at", last, file=sys.stderr)
    last = G.seq(last + 1, mid, sep=SEP, step=P.get("mstep", 14))
    print("mid loads end at", last, file=sys.stderr)
    assert last < B2
    def bar_b2():
        st.wait(vm=["wd8", "wdA"], lg=("B", 7, 7)); a("s_barrier"); G.rec = []
    G.add_pre(B2, bar_b2, cost=2)
    G.place(40, [f"s_mov_b32 s14, {FB}"])
    G.pv(max(B2, P.get("pb", 0)), V(poll_ld("s14"), "pb"), SEP)
    for i, m in enumerate((2, 9, 20)): m = G.seq(252 + m + 3, ypair(i), sep=SEP)
    G.place(max(B2, 276), sum([rd2(j) for j in range(D)], []), step=1)
    fine(G, 2)
    G.emit()
    a("s_branch L_g2")
    rec = G.rec; tailsep = 288 - m
    snap2 = (list(st.vm), st.vm_done, list(st.lg), st.lg_done)
    a("L_idle:")
    st.vm, st.vm_done, st.lg, st.lg_done = snap
    for t in range(4): run(epi_main(1, 1, t))
    def fs4(i):
        if FINE and P["ph"] == 4: a(f"s_memrealtime s[{86+2*i}:{87+2*i}]")
    a(f"s_mov_b32 s14, {FB}")
    n0 = P.get("n0", 0)
    fs4(0); run(wdA[:n0]); fs4(1); run(pubB); fs4(2); run(wdA[n0:]); fs4(3)
    if NA < 9:
        a(f"s_cmp_lg_u32 s{sw}, 0"); a("s_cbranch_scc1 L_idle2")
        for op in range(8):
            a(f"v_add_u32 v{t0}, {8*op*1152}, v{vW0}")
            sw_ = (op & 4) | ((op & 1) << 1) | ((op >> 1) & 1)
            run([V(f"buffer_load_dwordx4 v{t0}, s[{sWd}:{sWd+3}], s{sWo+p} offen lds", "wd", f"s_mov_b32 m0, {RA + p*8192 + (sw_ if p == 4 else op)*1024}") for p in range(NA, 9)])
    a("L_idle2:")
    run(mid); fs4(4)
    if FINE and P["ph"] == 4: a("s_waitcnt vmcnt(0)"); fs4(5)
    a("s_waitcnt vmcnt(0) lgkmcnt(0)"); a("s_barrier")
    for j in range(D): run(rd2(j))
    run(rec)
    st.vm, st.vm_done, st.lg, st.lg_done = snap2
    assert st.lg[-2 * D:] == [("g", j >> 1) for j in range(2 * D)]
    a("L_g2:")
    mk(5)()
    G = G2(st); G.vp[-tailsep] = 99
    started = {0}; T_ = {}
    for j, (s, s_) in enumerate(fr):
        w = WR + 4 * (j % NW)
        for t in range(4):
            c = accof[s] + 4 * t
            src = f"v[{c}:{c+3}]" if s in started else "0"
            m = G.mfma(f"v_mfma_f32_16x16x32_bf16 v[{c}:{c+3}], v[{w}:{w+3}], {xreg(s_,t)}, {src}")
            if t == 0: G.add_pre(m, lambda j=j, s=s, s_=s_: st.wait(vm=("hl", s_) if (s == 8 and s_ < 16) else None, lg=("g", j)))
        started.add(s); T_[s] = m + 1
    def bar2(tag):
        def f():
            st.wait(vm=tag); a("s_barrier")
        return f
    for j in range(len(fr) - D):
        s, s_ = fr[j + D]
        if s_ == 0 and s == 3: G.add_pre(4 * j, bar2("wdD"), cost=2)
        r = rd2(j + D)
        G.add_gap(4 * j, r[0]); G.add_gap(4 * j + 1, r[1])
    B3 = P.get("b3", 186)
    assert B3 >= 96
    G.add_pre(B3, "s_barrier")
    for s in range(4, -1, -1):
        r = areg[s]
        G.place(T_[s + 3], [f"v_xor_b32 v{r}, {((s ^ (s + 3)) & 3) << 5}, v{r}"] + ([f"v_add_u32 v{r}, {RB}, v{r}"] if 1 <= s <= 3 else []) + [f"v_add_u32 v{r+1}, 65536, v{r}"])
    lasty = G.seq(2, ypair(3), sep=2)
    lastb = G.place(max(lasty + 1, P.get("pbc", 30)), [lambda: st.wait(vm="pb")] + check([poll_ld("s14")], poll_t))
    G.seq(P.get("f4", 100), [lambda: st.wait(vm="yst"), flag_st("s50")], sep=SEP)
    lastl = G.seq(lastb + 1, late, sep=SEP, step=P.get("lstep", 5))
    print("late loads end at", lastl, file=sys.stderr)
    wdB = wd_dma(RB, (vD0, vD1), [(p, h) for p in range(8, -1, -1) for h in (1, 0)], "wdD")
    nb = P.get("nb", 3)
    if nb: assert G.seq(lasty + 1, wdB[:nb], sep=SEP, step=5) < lastb + 4
    fs = lines(f"""s_mul_i32 s12, s{sw}, 3072
    s_add_u32 s12, s12, {YB}
    v_lshrrev_b32 v{t0}, 2, v{vl}
    v_and_b32 v{t1}, 3, v{vl}
    v_lshl_add_u32 v{t2}, v{t1}, 3, s12
    v_lshl_add_u32 v{vYr}, v{t0}, 7, v{t2}
    v_lshlrev_b32 v{t2}, 4, v{t1}
    v_lshl_add_u32 v{vYs8}, v{t0}, 12, v{t2}
    v_and_b32 v{t2}, 3, v{t0}
    v_lshl_add_u32 v{t3}, v{t1}, 2, v{t2}
    s_lshl_b32 s81, s{sw}, 3
    s_add_u32 s81, s81, s12
    v_lshl_add_u32 v{vYr8}, v{t3}, 6, s81
    v_bfe_u32 v{t3}, v{vl}, 4, 1
    v_lshl_add_u32 v{vYr8}, v{t3}, 5, v{vYr8}
    v_lshlrev_b32 v{t1}, 4, v{t1}
    v_mov_b32 v{SS+2}, 0x3f80
    v_mov_b32 v{SS+3}, 0
    v_lshlrev_b64 v[{SS+2}:{SS+3}], v{t1}, v[{SS+2}:{SS+3}]
    v_cmp_eq_u32 vcc, 0, v{t2}@s_nop 1@v_cndmask_b32 v{S8}, 0, v{SS+2}, vcc
    v_cndmask_b32 v{S8+1}, 0, v{SS+3}, vcc
    v_cmp_eq_u32 vcc, 1, v{t2}@s_nop 1@v_cndmask_b32 v{S8+2}, 0, v{SS+2}, vcc
    v_cndmask_b32 v{S8+3}, 0, v{SS+3}, vcc
    v_lshrrev_b32 v{t1}, 4, v{vl}
    v_cmp_eq_u32 vcc, v{t1}, v{t2}@s_nop 1@v_cndmask_b32 v{SS}, 0, v{SS+2}, vcc
    v_cndmask_b32 v{SS+1}, 0, v{SS+3}, vcc
    v_mov_b32 v{SS+2}, v{SS}
    v_mov_b32 v{SS+3}, v{SS+1}
    v_lshrrev_b32 v{t0}, 3, v{vl}
    v_and_b32 v{t1}, 7, v{vl}
    v_lshlrev_b32 v{t1}, 4, v{t1}
    v_lshl_add_u32 v{vYs}, v{t0}, 12, v{t1}
    s_sub_u32 s81, s77, s76
    s_sub_u32 s81, s81, 16
    v_mul_lo_u32 v{t0}, v{t3}, s81
    v_and_b32 v{t1}, 31, v{vl}
    v_add_lshl_u32 v{vPa}, v{t0}, v{t1}, 7
    s_lshl_b32 s14, s76, 7
    s_add_u32 s14, s14, {F4}
    s_add_u32 s13, s13, {FP - FB}
    v_and_b32 v{t0}, 7, v{vl}
    s_and_b32 s81, s2, 0xf8
    v_add_u32 v{t0}, s81, v{t0}
    s_lshr_b32 s81, s{sk}, 1
    v_lshl_add_u32 v{t2}, v{t0}, 2, s81
    v_lshl_add_u32 v{t0}, v{t0}, 2, s{sw}
    s_mov_b64 vcc, 0xff00
    v_cndmask_b32 v{t0}, v{t0}, v{t2}, vcc
    v_lshlrev_b32 v{t3}, 7, v{t0}""")
    last = G.place(lastb + 1, fs)
    if P.get("po", 0) == 2:
        last = poison(G, max(last + 1, P.get("pom", 110)), P.get("pos", 10), PO=24)
    pk = [0]
    def epi(s):
        fs = []; acc = accof[s]
        if s == 8: fs.append(f"s_add_u32 s82, s{sP8}, 65536")
        else: fs.append(f"s_xor_b32 s82, s{sPo}, {(s<<16)|(s<<13)}")
        for h in range(2):
            o = PK + 4 * (pk[0] % 4); pk[0] += 1
            for i in range(4):
                ii = i ^ 2 if s in (6, 4, 2) else i
                fs.append(f"v_cvt_pk_bf16_f32 v{o+i}, v{acc+8*h+2*ii}, v{acc+8*h+2*ii+1}")
            if s <= NPO: fs.append(f"v_min_u32 v{o}, -2, v{o}")
            if s == 8: fs.append(pst(o, "s82" if h else f"s{sP8}", 0, ("ps", s)))
            else: fs.append(pst(o, "s82", 1024 * h, ("ps", s)))
        return fs
    def inreg(s, h): return RH[h] + 2 + 4 * (7 - s)
    def pso(s): return 51 + s if s <= NPO else 56 + (s & 1)
    def pld(s): return [f"buffer_load_dwordx4 v[{inreg(s,h)}:{inreg(s,h)+3}], v{vX}, {WS}, s{pso(s)} offen offset:{1024*h}{sc}" for h in range(2)]
    def pload(s): return [f"s_xor_b32 s{pso(s)}, s{sPo}, {s<<13}"] + [V(l, ("pl", s)) for l in pld(s)]
    def pchk(ss):
        rs = [inreg(s, h) for s in ss for h in range(2)]
        t = [f"v_max_u32 v{t0}, v{rs[0]}, v{rs[1]}"] + [f"v_max3_u32 v{t0}, v{t0}, v{rs[i]}, v{rs[i+1]}" for i in range(2, len(rs), 2)]
        return [lambda: st.wait(vm=[("pl", s) for s in ss])] + check(sum([pld(s) for s in ss], []), t + [f"v_cmp_eq_u32 vcc, -1, v{t0}"])
    def unpk(dst, src): return [f"v_lshlrev_b32 v{dst}, 16, v{src}", f"v_and_b32 v{dst+1}, s51, v{src}"]
    E = P.get("E", 4)
    last = G.seq(T_[7], epi(8), sep=SEP)
    last = G.seq(last + 1, epi(7), sep=SEP)
    last = G.seq(max(last + 1, T_[6] + E), epi(6), sep=SEP)
    le = {}
    for s in range(5, 0, -1): le[s] = G.seq(T_[s] + E, epi(s), sep=SEP)
    last = G.seq(lastl + 1, wdB[nb:], sep=SEP, step=P.get("dstep", 6))
    assert last > B3
    G.seq(max(last + 1, P.get("xr", 0)), xres, sep=SEP, step=P.get("xrs", 10))
    print("wdD ends at", last, T_, file=sys.stderr)
    G.seq(P.get("p4", 312), [V(poll_ld("s14"), "p4")], sep=SEP)
    last = G.place(P.get("p4c", 376), [lambda: st.wait(vm="p4")] + check([poll_ld("s14")], poll_t) + [f"v_mov_b32 v{vPa}, v{t3}", f"s_mov_b32 s14, {FP}"])
    G.seq(P.get("fp", 350), [lambda: st.wait(vm=("ps", NPO + 1)), flag_st("s13")], sep=SEP)
    last = G.seq(last + 1, [V(f"buffer_load_dwordx4 v{vYs}, {WS}, s40 offen{sc} lds", "yl", "s_mov_b32 m0, s12"),
        V(f"buffer_load_dwordx4 v{vYs}, {WS}, s41 offen offset:1024{sc} lds", "yl", "s_mov_b32 m0, s12"),
        V(f"buffer_load_dwordx4 v{vYs8}, {WS}, s42 offen offset:2048{sc} lds", "yl", "s_mov_b32 m0, s12")], sep=SEP, step=6)
    assert last < P.get("pp", 480)
    last = G.place(le[3] + 1, [lambda: st.wait(vm="xr")] + sum([unpk(accof[0] + 4 * t + 2 * i, XR[t] + i) for t in range(4) for i in range(2)], []) +
                   unpk(A8, X8) + unpk(A8 + 2, X8 + 1))
    G.seq(P.get("pp", 480), [V(poll_ld("s14"), "pp")], sep=SEP)
    fs = [lambda: st.wait(vm="yl")]
    fs += [lambda t=t: st.lds(f"ds_read_b64_tr_b16 v[{RH[t>>1]+30*(t&1)}:{RH[t>>1]+30*(t&1)+1}], v{vYr} offset:{32*t}", "yr") for t in range(4)]
    fs += [lambda: st.lds(f"ds_read_b64_tr_b16 v[{Y8}:{Y8+1}], v{vYr8} offset:2048", "yr")]
    last = G.place(max(last + 1, P.get("yr", 490)), fs, step=1)
    last = G.place(last + 10, [lambda: st.wait(lg="yr")] + unpk(Y8 + 2, Y8) + unpk(Y8 + 4, Y8 + 1) + [f"v_add_f32 v{A8+i}, v{A8+i}, v{Y8+2+i}" for i in range(4)])
    last = G.place(max(last + 1, P.get("ppc", 545)), [lambda: st.wait(vm="pp")] + check([poll_ld("s14")], poll_t))
    assert last < T_[1] - 4
    fs = [f"s_add_u32 s50, s49, 4096"] + [V(f"buffer_load_dwordx4 v[{IN8+4*i}:{IN8+4*i+3}], v{vI8}, {WS}, s{49+i} offen{sc}", "p8") for i in range(2)]
    for s in range(7, 1, -1): fs += pload(s)
    last = G.seq(last + 1, fs, sep=SEP, step=P.get("pstep", 5))
    last = G.seq(max(last + 1, T_[0] - P.get("l1", 6)), pload(1), sep=2)
    print("g2 fillers end at", last, "of", len(G.mf), file=sys.stderr)
    fine(G, 3)
    G.emit()
    mk(6)()
    def summ(i):
        for h in range(2):
            c = accof[0] + 8 * h + 4 * (i & 1); r = RH[h] + 4 * i
            a(f"v_mfma_f32_16x16x32_bf16 v[{c}:{c+3}], v[{SS}:{SS+3}], v[{r}:{r+3}], v[{c}:{c+3}]")
    st.wait(vm="p8")
    for i in range(2): a(f"v_mfma_f32_16x16x32_bf16 v[{A8}:{A8+3}], v[{S8}:{S8+3}], v[{IN8+4*i}:{IN8+4*i+3}], v[{A8}:{A8+3}]")
    st.wait(vm=("pl", 5))
    for i in range(3): summ(i)
    a(f"v_cvt_pk_bf16_f32 v{Y8}, v{A8}, v{A8+1}"); a(f"v_cvt_pk_bf16_f32 v{Y8+1}, v{A8+2}, v{A8+3}")
    osc = ("", " sc1", " nt", " sc0 sc1")[P.get("osc", 0)]
    run(pchk((4, 3, 2)))
    for i in range(3, 6): summ(i)
    run(pchk((1,)))
    for i in range(6, 8): summ(i)
    st.vmem(f"buffer_store_dwordx2 v[{Y8}:{Y8+1}], v{vXO8}, s[{sO}:{sO+3}], s48 offen{osc}", "o")
    for n_, t in enumerate((0, 2, 1, 3)):
        o = PK + 2 * t; c = accof[0] + 4 * t
        a(f"s_nop {(4, 0, 0, 0)[n_]}")
        a(f"v_cvt_pk_bf16_f32 v{o}, v{c}, v{c+1}"); a(f"v_cvt_pk_bf16_f32 v{o+1}, v{c+2}, v{c+3}")
        st.vmem(f"buffer_store_dwordx2 v[{o}:{o+1}], v{vXO}, s[{sO}:{sO+3}], s{44+t} offen{osc}", "o")
    if STAMP[0]:
        a("s_waitcnt vmcnt(0)"); stamp(a, 7)
        if "probe" in P:
            i = P["probe"]
            a(f"v_readfirstlane_b32 s76, v{vTok}"); a("s_waitcnt lgkmcnt(0)")
            a(f"s_sub_u32 s77, s{84+2*i}, s76" if i >= 0 else "s_mov_b32 s77, 0")
            if i < -1:
                a("s_getreg_b32 s77, hwreg(HW_REG_XCC_ID, 0, 4)"); a("s_sub_u32 s77, s77, s2"); a("s_and_b32 s77, s77, 7")
                if i == -3: a("s_sub_u32 s77, 7, s77")
                a("s_mul_i32 s77, s77, 200")
            a("s_add_u32 s77, s77, 6000")
            a("L_probe:"); a("s_sleep 2"); a("s_memrealtime s[78:79]"); a("s_waitcnt lgkmcnt(0)")
            a("s_sub_u32 s78, s78, s76"); a("s_cmp_lt_i32 s78, s77"); a("s_cbranch_scc1 L_probe")
        else: stamp_flush(a, 0, 8, sw)
    a("L_end:")
    a("s_endpgm")
    a("L_pref:")
    PF = P.get("pf", 31)
    a(f"""
    s_lshr_b32 s80, s2, 3
    s_mul_i32 s82, s{sk}, 1152
    v_lshrrev_b32 v0, 2, v{vl}
    v_mul_u32_u24 v0, 9216, v0
    v_and_b32 v1, 3, v{vl}
    v_lshl_add_u32 v0, v1, 7, v0
    s_add_u32 s81, s80, 4
    s_mul_i32 s81, s81, {16*9216}
    s_add_u32 s81, s81, s82
    """)
    if PF & 1:
        a(f"buffer_load_dword v2, v0, s[{sWg}:{sWg+3}], s81 offen")
        a(f"buffer_load_dword v3, v0, s[{sWu}:{sWu+3}], s81 offen offset:1024")
    if PF & 2:
        a(f"""
        s_and_b32 s81, s80, 7
        s_add_u32 s81, s81, 32
        s_cmp_ge_u32 s81, 36
        s_cselect_b32 m0, 36, 0
        s_sub_u32 s81, s81, m0
        s_mul_i32 s81, s81, {16*9216}
        s_add_u32 s81, s81, s82
        s_cmp_ge_u32 s80, 24
        s_cbranch_scc1 L_kgdone
        s_cmp_ge_u32 s80, 16
        s_cbranch_scc1 L_pref2
        buffer_load_dword v4, v0, s[{sWg}:{sWg+3}], s81 offen offset:640
        s_branch L_kgdone
        L_pref2:
        buffer_load_dword v4, v0, s[{sWu}:{sWu+3}], s81 offen offset:1664
        """)
    a("s_branch L_kgdone")
    for (L, B, loads, test) in slow:
        a(f"{L}:")
        a("s_add_u32 s3, s3, 1"); a(f"s_cmp_gt_u32 s3, {TMO}"); a("s_cbranch_scc1 L_end2")
        run(loads); a("s_waitcnt vmcnt(0)"); run(test)
        a(f"s_cbranch_vccnz {L}"); a(f"s_branch {B}")
    a("L_end2:")
    a.end(n, 256, 256, 163840, vgpr=512, accum=256)

def build_text(hdr="", **kw):
    a = Asm(); k_fused(a, **kw)
    return a.text(hdr, single=True)

if __name__ == "__main__":
    if "stamp" in sys.argv: STAMP[0] = True
    kw = {}; P = {}
    for x in sys.argv[2:]:
        if "=" in x:
            k_, v_ = x.split("=");
            if k_ in ("RING", "NW", "XD", "xstep"): kw[k_] = int(v_)
            else: P[k_] = int(v_)
    open(sys.argv[1], "w").write(build_text(header(), P=P, **kw))
```
